```python
import torch

def _softmax(x, axis=-1):
    return torch.softmax(x, dim=axis)
def _gelu(x):
    return torch.nn.functional.gelu(x, approximate="tanh")
def _silu(x):
    return torch.nn.functional.silu(x)
def _sigmoid(x):
    return torch.sigmoid(x)
def _layernorm(x, axis=-1, eps=1e-5):
    m = x.mean(dim=axis, keepdim=True)
    v = x.var(dim=axis, keepdim=True, unbiased=False)
    return (x - m) / torch.sqrt(v + eps)
def _scatter_add(tgt, idx, src, axis=0):
    return tgt.clone().index_add_(axis, idx, src)
def _segment_sum(src, seg, n):
    out = torch.zeros((n,) + src.shape[1:], dtype=src.dtype)
    return out.index_add_(0, seg, src)
def _pad(x, pw):
    flat = tuple(v for pair in reversed(pw) for v in pair)
    return torch.nn.functional.pad(x, flat)

kernel_name = 'gated_mix__mha_block_cached__moe_arch_mod__decode'

def setup_inputs():

    _w = (lambda a: (lambda t: t.to(torch.bfloat16) if t.is_floating_point() else t)(torch.as_tensor(a)))
    def _A_setup():
        B, Sq, D = 8, 1, 512
        H, Sk, Dh = 32, 4096, 128
        return {
            "x": _w((lambda *s: torch.randn(*s, dtype=torch.bfloat16) * 0.05)(B, Sq, D)),
            "k_cache": _w((lambda *s: torch.randn(*s, dtype=torch.bfloat16) * 3.2)(B, H, Sk, Dh)),
            "v_cache": _w((lambda *s: torch.randn(*s, dtype=torch.bfloat16) * 1.6)(B, H, Sk, Dh)),
            "wq": _w((lambda *s: torch.randn(*s, dtype=torch.bfloat16) * 3.2)(D, H * Dh) * (D ** -0.5)),
            "wo": _w((lambda *s: torch.randn(*s, dtype=torch.bfloat16) * 1.6)(H * Dh, D) * ((H * Dh) ** -0.5)),
        }
    _A_in = _A_setup()

    def _B_setup():
        B, S, D, F, C = 8, 1, 512, 1792, 1
        return {
            "x": _w((lambda *s: torch.randn(*s, dtype=torch.bfloat16) * 0.05)(B, S, D)),
            "w_r": _w((lambda *s: torch.randn(*s, dtype=torch.bfloat16) * 1.6)(D)),
            "w_gate": _w((lambda *s: torch.randn(*s, dtype=torch.bfloat16) * 0.1)(D, F)),
            "w_up": _w((lambda *s: torch.randn(*s, dtype=torch.bfloat16) * 0.1)(D, F)),
            "w_down": _w((lambda *s: torch.randn(*s, dtype=torch.bfloat16) * 0.1)(F, D)),
        }
    _B_in = _B_setup()

    return {
        "A_x": _A_in["x"],
        "A_k_cache": _A_in["k_cache"],
        "A_v_cache": _A_in["v_cache"],
        "A_wq": _A_in["wq"],
        "A_wo": _A_in["wo"],
        "B_x": _B_in["x"],
        "B_w_r": _B_in["w_r"],
        "B_w_gate": _B_in["w_gate"],
        "B_w_up": _B_in["w_up"],
        "B_w_down": _B_in["w_down"],
        "gate_w": _w((lambda *s: torch.randn(*s, dtype=torch.bfloat16) * 0.05)(512) * 16.0),
    }

def reference(A_x, A_k_cache, A_v_cache, A_wq, A_wo, B_x, B_w_r, B_w_gate, B_w_up, B_w_down, gate_w):
    def _A_ref(x, k_cache, v_cache, wq, wo):
        B, Sq, D = x.shape
        H, Dh = 32, 128
        q = (lambda x, *d: x.permute(*d))((x @ wq).reshape(B, Sq, H, Dh), 0, 2, 1, 3)
        scores = torch.einsum("bhqd,bhkd->bhqk", q, k_cache) * (Dh ** -0.5)
        p = _softmax(scores, axis=-1)
        o = torch.einsum("bhqk,bhkd->bhqd", p, v_cache)
        return (lambda x, *d: x.permute(*d))(o, 0, 2, 1, 3).reshape(B, Sq, H * Dh) @ wo

    def _B_ref(x, w_r, w_gate, w_up, w_down):
        B, S, D = x.shape
        C = 1
        r = x @ w_r
        idx = torch.argsort(-r, axis=-1)[:, :C]
        idx_e = (lambda x, n, axis: torch.repeat_interleave(x, n, dim=axis))(idx.reshape(B, C, 1), D, axis=2)
        x_sel = (lambda x, i, axis: torch.take_along_dim(x, i, dim=axis))(x, idx_e, axis=1)
        g = _silu(x_sel @ w_gate)
        u = x_sel @ w_up
        y = (g * u) @ w_down
        r_sel = _sigmoid((lambda x, i, axis: torch.take_along_dim(x, i, dim=axis))(r, idx, axis=1))
        y = y * r_sel.reshape(B, C, 1)
        b_off = (torch.arange(B) * S).reshape(B, 1)
        flat_idx = (idx + b_off).reshape(B * C)
        zero = (x * 0.0).reshape(B * S, D)
        upd = _scatter_add(zero, flat_idx, y.reshape(B * C, D), axis=0)
        return x + upd.reshape(B, S, D)

    x = A_x
    g = _sigmoid((x * gate_w).sum(-1, keepdims=True))
    a = _A_ref(x, A_k_cache, A_v_cache, A_wq, A_wo)
    b = _B_ref(x, B_w_r, B_w_gate, B_w_up, B_w_down)
    return g * a + (1 - g) * b
```

```python
import re

TRANS = ("v_exp_f32", "v_log_f32", "v_rcp_f32", "v_rsq_f32", "v_sqrt_f32", "v_sin_f32", "v_cos_f32")

def _regs(tok):
    tok = tok.strip()
    tok = tok.lstrip("-")
    m = re.match(r"^abs\((.*)\)$", tok)
    if m: tok = m.group(1)
    m = re.match(r"^\|(.*)\|$", tok)
    if m: tok = m.group(1)
    m = re.match(r"^([vsa])(\d+)$", tok)
    if m: return [(m.group(1), int(m.group(2)))]
    m = re.match(r"^([vsa])\[(\d+):(\d+)\]$", tok)
    if m: return [(m.group(1), i) for i in range(int(m.group(2)), int(m.group(3)) + 1)]
    if tok == "vcc": return [("s", 106), ("s", 107)]
    if tok == "vcc_lo": return [("s", 106)]
    if tok == "vcc_hi": return [("s", 107)]
    if tok == "exec": return [("s", 126), ("s", 127)]
    if tok == "m0": return [("s", 124)]
    return []

class Ins:
    def __init__(self, text):
        self.text = text
        t = text.split(";")[0].strip()
        self.is_label = t.endswith(":")
        self.op = ""
        self.dst = []; self.src = []; self.srcc = []; self.dppsrc = []
        self.kind = "other"
        self.states = 1
        if self.is_label or not t or t.startswith("."):
            self.kind = "label" if self.is_label else "dir"
            self.states = 0
            self.name = t[:-1] if self.is_label else None
            return
        parts = t.split(None, 1)
        self.op = op = parts[0]
        rest = parts[1] if len(parts) > 1 else ""
        ops = []; cur = ""; depth = 0
        for ch in rest:
            if ch in "[(": depth += 1
            if ch in "])": depth -= 1
            if ch == "," and depth == 0:
                ops.append(cur.strip()); cur = ""
            else:
                cur += ch
        if cur.strip(): ops.append(cur.strip())
        mods = ""
        if ops:
            sp = ops[-1].split(None, 1)
            ops[-1] = sp[0]
            mods = sp[1] if len(sp) > 1 else ""
        self.ops = ops; self.mods = mods
        if op == "s_nop":
            self.kind = "nop"; self.states = int(ops[0], 0) + 1; return
        if op.startswith("v_"):
            self.kind = "valu"
            self.is_dpp = op.endswith("_dpp") or "row_" in mods or "quad_perm" in mods
            base = op
            if op.startswith("v_permlane") and "swap" in op:
                self.dst = _regs(ops[0]) + _regs(ops[1]); self.src = list(self.dst); self.kind2 = "permlane"
                return
            self.kind2 = ""
            if op.startswith("v_cmp"):
                self.dst = _regs(ops[0]); self.src = sum((_regs(o) for o in ops[1:]), [])
                return
            if op.startswith("v_readfirstlane") or op.startswith("v_readlane"):
                self.dst = _regs(ops[0]); self.src = sum((_regs(o) for o in ops[1:]), []); self.kind2 = "readlane"
                return
            self.dst = _regs(ops[0])
            srcs = ops[1:]
            if op.startswith(("v_add_co", "v_sub_co", "v_addc_co", "v_subb_co")):
                self.dst += _regs(ops[1]); srcs = ops[2:]
            self.src = sum((_regs(o) for o in srcs), [])
            if op.startswith(("v_dot2c", "v_fmac", "v_pk_fmac")):
                self.srcc = list(self.dst)
            if op.startswith("v_dot2_"):
                self.srcc = _regs(ops[3]); self.src = _regs(ops[1]) + _regs(ops[2])
            if op.startswith("v_dot"):
                self.kind2 = "dot"
                self.srcab = _regs(ops[1]) + _regs(ops[2])
            if any(op.startswith(x) for x in TRANS):
                self.kind2 = "trans"
            if op.startswith("v_cndmask") and len(ops) == 3:
                self.src += _regs("vcc")
            if self.is_dpp:
                self.dppsrc = _regs(ops[1])
                self.src += self.dst
            return
        if op.startswith(("buffer_", "global_", "flat_", "ds_")):
            self.kind = "mem"
            allr = [_regs(o) for o in ops]
            self.wide_store = False
            if op.startswith(("buffer_load", "global_load", "ds_read", "ds_bpermute", "ds_permute", "ds_swizzle")) and "lds" not in mods.split() and "_lds_" not in op:
                self.dst = allr[0]; self.src = sum(allr[1:], [])
            elif op.startswith("ds_") and "_rtn" in op:
                self.dst = allr[0]; self.src = sum(allr[1:], [])
            elif op.startswith("buffer_atomic") and "sc0" in mods.split():
                self.dst = allr[0]; self.src = sum(allr, [])
            elif op.startswith("global_atomic") and "sc0" in mods.split():
                self.dst = allr[0]; self.src = sum(allr[1:], [])
            else:
                self.src = sum(allr, [])
                if op.startswith(("buffer_store_dwordx3", "buffer_store_dwordx4")):
                    self.wide_store = True; self.sdata = allr[0]
                if op.startswith(("global_store_dwordx3", "global_store_dwordx4")):
                    self.wide_store = True; self.sdata = allr[1]
            return
        if op.startswith("s_"):
            self.kind = "salu"
            if op.startswith(("s_cbranch", "s_branch")):
                self.kind = "branch"; self.target = ops[0]
            elif op.startswith(("s_cmp", "s_waitcnt", "s_barrier", "s_endpgm", "s_sleep", "s_setprio", "s_bitcmp")):
                self.src = sum((_regs(o) for o in ops), [])
            else:
                self.dst = _regs(ops[0]) if ops else []
                self.src = sum((_regs(o) for o in ops[1:]), [])
            return

def required(prev, cur):
    need = 0
    if prev.kind == "valu":
        pd = set(prev.dst)
        pv = {r for r in pd if r[0] == "v"}
        ps = {r for r in pd if r[0] == "s"}
        cur_reads = set(cur.src) | set(cur.srcc)
        if cur.kind == "valu":
            if pv & set(cur.dppsrc): need = max(need, 2)
            if cur.kind2 == "readlane" and pv & set(cur.src): need = max(need, 1)
            if cur.kind2 == "permlane" and pv & set(cur.src): need = max(need, 2)
            if ps & cur_reads:
                need = max(need, 4 if cur.kind2 == "readlane" else 2)
            if ("s", 126) in ps and cur.is_dpp: need = max(need, 5)
        if prev.kind2 == "trans" and pv & cur_reads and cur.kind in ("valu", "mem"):
            need = max(need, 1)
        if prev.kind2 == "dot" and cur.kind in ("valu", "mem"):
            if cur.op == prev.op:
                if pv & set(cur.srcab): need = max(need, 3)
                if (pv & set(cur.dst)) and not (pv & set(cur.srcc)): need = max(need, 3)
            else:
                if pv & (cur_reads | set(cur.dst)): need = max(need, 3)
        if cur.kind == "mem" and ps & set(cur.src): need = max(need, 5)
    if prev.kind == "mem" and getattr(prev, "wide_store", False):
        if cur.kind == "valu" and set(prev.sdata) & set(cur.dst): need = max(need, 2)
        elif set(prev.sdata) & set(cur.dst): need = max(need, 1)
    if prev.kind == "salu" and ("s", 124) in prev.dst and cur.kind == "mem" and ("lds" in cur.mods.split() or "_lds_" in cur.op or "addtid" in cur.op):
        need = max(need, 1)
    return need

class Asm:
    def __init__(self):
        self.ins = []
    def __call__(self, text):
        for line in text.split("\n"):
            if line.strip():
                self.ins.append(Ins(line.strip()))
    def label(self, name):
        self.ins.append(Ins(name + ":"))
    def pad(self):
        out = []
        for cur in self.ins:
            if cur.kind in ("label", "dir"):
                out.append(cur); continue
            dist = 0; need_total = 0
            for prev in reversed(out):
                if prev.kind in ("label", "dir"): continue
                if prev.op in ("s_branch", "s_endpgm"): break
                n = required(prev, cur)
                if n > dist: need_total = max(need_total, n - dist)
                dist += prev.states
                if dist >= 6: break
            if need_total:
                out.append(Ins(f"s_nop {need_total-1}"))
            out.append(cur)
        self.ins = out
        labels = {i.name: k for k, i in enumerate(out) if i.kind == "label"}
        for k, br in enumerate(out):
            if br.kind != "branch": continue
            tgt = labels[br.target]
            pre = []
            d = 0
            for prev in reversed(out[:k+1]):
                if prev.kind in ("label", "dir"): continue
                pre.append((prev, d)); d += prev.states
                if d >= 6: break
            d2 = 0
            for cur in out[tgt:]:
                if cur.kind in ("label", "dir"): continue
                for prev, dp in pre:
                    n = required(prev, cur)
                    if n > dp + d2:
                        raise Exception(f"hazard across branch {br.text}: {prev.text} -> {cur.text} need {n} have {dp+d2}")
                d2 += cur.states
                if d2 >= 6 or cur.op in ("s_branch", "s_endpgm"): break
    def text(self):
        lines = []
        for i in self.ins:
            if i.kind in ("label", "dir"): lines.append(i.text)
            else: lines.append("    " + i.text)
        return "\n".join(lines) + "\n"
```

```python
import sys, os, math, struct
sys.path.insert(0, os.path.dirname(os.path.abspath(__file__)))
from asmlib import Asm
KN = "gated_mix__mha_block_cached__moe_arch_mod__decode_kernel"

HEADER = open(os.path.join(os.path.dirname(os.path.abspath(__file__)), "header.txt")).read()

def f2u(x):
    return struct.unpack("<I", struct.pack("<f", x))[0]

LOG2E = 1.4426950408889634
CSCALE = LOG2E * (128 ** -0.5)

L_QPART = 0
L_FPART = 2048
L_OPART = 4096
L_ML    = 8192
L_CNT   = 8320
L_FLAG  = 8324
LDS_BYTES = 8448

class VM:
    def __init__(self, a): self.a = a; self.q = []; self.seen = set()
    def issue(self, tag): self.q.append(tag); self.seen.add(tag)
    def wait(self, tag):
        assert tag in self.seen, tag
        if tag not in self.q: return
        idx = max(i for i, t in enumerate(self.q) if t == tag)
        n = len(self.q) - 1 - idx
        assert n <= 63
        self.a(f"s_waitcnt vmcnt({n})")
        self.q = self.q[idx+1:]
    def waitall(self):
        self.a("s_waitcnt vmcnt(0)"); self.q = []

def vr(b, n=4): return f"v[{b}:{b+n-1}]"

def gen(R=2, E=4, Dq=6, Dh=4, wflags="", kvflags="nt", stamp=False, final="wg", prio=0, mapmode=0, xflags=""):
    NS, NH = 4, 4
    a = Asm()
    NG = 64
    assert (NG - E) % R == 0
    a(f"s_cmp_ge_u32 s2, 256")
    a("s_cbranch_scc1 L_done")
    a("s_load_dwordx16 s[4:19], s[0:1], 0")
    a("s_load_dwordx8 s[20:27], s[0:1], 64")
    a("s_load_dwordx4 s[28:31], s[0:1], 96")
    if stamp: a("s_memrealtime s[88:89]")
    a("v_lshrrev_b32 v1, 6, v0")
    a("v_and_b32 v0, 63, v0")
    a("v_readfirstlane_b32 s3, v1")
    if mapmode == 0:
        a("s_and_b32 s33, s2, 7")
        a("s_lshl_b32 s33, s33, 2")
        a("s_lshr_b32 s32, s2, 3")
        a("s_and_b32 s34, s32, 3")
        a("s_add_u32 s33, s33, s34")
        a("s_lshr_b32 s32, s32, 2")
    elif mapmode == 1:
        a("s_and_b32 s33, s2, 7")
        a("s_lshl_b32 s33, s33, 2")
        a("s_lshr_b32 s32, s2, 3")
        a("s_lshr_b32 s34, s32, 3")
        a("s_add_u32 s33, s33, s34")
        a("s_and_b32 s32, s32, 7")
    elif mapmode == 2:
        a("s_and_b32 s33, s2, 31")
        a("s_lshr_b32 s32, s2, 5")
    a("s_lshl_b32 s34, s32, 5")
    a("s_add_u32 s34, s34, s33")
    a("s_mov_b32 s46, 0x05040100")
    a("s_mov_b32 s47, 0x07060302")
    a(f"s_mov_b32 s48, {f2u(CSCALE):#x}")
    a(f"s_cmp_lt_u32 s3, {NH}")
    a("s_cbranch_scc1 L_helper")

    vm = VM(a)
    a(f"s_sub_u32 s3, s3, {NH}")
    a("s_lshl_b32 s35, s3, 12")
    a("v_lshlrev_b32 v1, 4, v0")
    a("v_add_u32 v1, s35, v1")
    a("s_lshl_b32 s35, s34, 20")
    a("s_mov_b32 s38, 0x100000")
    a("s_mov_b32 s39, 0x20000")
    a("s_mov_b32 s42, 0x100000")
    a("s_mov_b32 s43, 0x20000")
    a("s_mov_b32 s44, 0")
    a("s_waitcnt lgkmcnt(0)")
    a("s_add_u32 s36, s6, s35")
    a("s_addc_u32 s37, s7, 0")
    a("s_add_u32 s40, s8, s35")
    a("s_addc_u32 s41, s9, 0")
    BUF = 48
    Q, O, M, Lr, S, P, PK, AL, MC, MN, T = 4, 8, 16, 17, 18, 22, 26, 28, 30, 31, 32
    def kreg(slot, i): return BUF + slot * 32 + i * 4
    def vreg(slot, i): return BUF + slot * 32 + 16 + i * 4
    def issueK(slot):
        for i in range(4):
            a(f"buffer_load_dwordx4 {vr(kreg(slot,i))}, v1, s[36:39], s44 offen offset:{i*1024} {kvflags}")
            vm.issue(("K", slot))
    def issueV(slot):
        for i in range(4):
            a(f"buffer_load_dwordx4 {vr(vreg(slot,i))}, v1, s[40:43], s44 offen offset:{i*1024} {kvflags}")
            vm.issue(("V", slot))
        a(f"s_add_u32 s44, s44, {NS*4096}")
    for s in range(R + E):
        issueK(s); issueV(s)
    a(f"v_mov_b32 v{M}, 0xff800000")
    a(f"v_mov_b32 v{Lr}, 0")
    for j in range(8): a(f"v_mov_b32 v{O+j}, 0")
    a("v_and_b32 v2, 15, v0")
    a("v_lshlrev_b32 v2, 5, v2")
    a("s_barrier")
    if stamp: a("s_memrealtime s[90:91]")
    TQ = [32, 40, 240, 248]
    for hw in range(4):
        a(f"ds_read_b128 {vr(TQ[hw])}, v2 offset:{L_QPART + hw*512}")
        a(f"ds_read_b128 {vr(TQ[hw]+4)}, v2 offset:{L_QPART + hw*512 + 16}")
    a("s_waitcnt lgkmcnt(4)")
    for j in range(0, 8, 2): a(f"v_pk_add_f32 {vr(32+j,2)}, {vr(32+j,2)}, {vr(40+j,2)}")
    a("s_waitcnt lgkmcnt(0)")
    for j in range(0, 8, 2): a(f"v_pk_add_f32 {vr(240+j,2)}, {vr(240+j,2)}, {vr(248+j,2)}")
    for j in range(0, 8, 2): a(f"v_pk_add_f32 {vr(32+j,2)}, {vr(32+j,2)}, {vr(240+j,2)}")
    for j in range(4): a(f"v_cvt_pk_bf16_f32 v{Q+j}, v{32+2*j}, v{33+2*j}")

    def process(slot, reissue):
        vm.wait(("K", slot))
        for i in range(4): a(f"v_dot2_f32_bf16 v{S+i}, v{kreg(slot,i)}, v{Q}, 0")
        for c in range(1, 4):
            for i in range(4): a(f"v_dot2c_f32_bf16 v{S+i}, v{kreg(slot,i)+c}, v{Q+c}")
        if reissue: issueK(slot)
        for dpp in ("quad_perm:[1,0,3,2]", "quad_perm:[2,3,0,1]", "row_half_mirror", "row_mirror"):
            for i in range(4): a(f"v_add_f32_dpp v{S+i}, v{S+i}, v{S+i} {dpp} row_mask:0xf bank_mask:0xf")
        a(f"v_max3_f32 v{MN}, v{S}, v{S+1}, v{M}")
        a(f"v_max3_f32 v{MN}, v{S+2}, v{S+3}, v{MN}")
        a(f"v_mul_f32 v{MC}, s48, v{MN}")
        a(f"v_fma_f32 v{AL}, v{M}, s48, -v{MC}")
        for i in range(4): a(f"v_fma_f32 v{P+i}, v{S+i}, s48, -v{MC}")
        a(f"v_exp_f32 v{AL}, v{AL}")
        for i in range(4): a(f"v_exp_f32 v{P+i}, v{P+i}")
        a(f"v_mov_b32 v{M}, v{MN}")
        for j in range(0, 8, 2): a(f"v_pk_mul_f32 {vr(O+j,2)}, {vr(O+j,2)}, {vr(AL,2)} op_sel_hi:[1,0]")
        a(f"v_mul_f32 v{Lr}, v{Lr}, v{AL}")
        a(f"v_cvt_pk_bf16_f32 v{PK}, v{P}, v{P+1}")
        a(f"v_cvt_pk_bf16_f32 v{PK+1}, v{P+2}, v{P+3}")
        vm.wait(("V", slot))
        for pr in range(2):
            for c in range(4):
                a(f"v_perm_b32 v{T+pr*8+2*c}, v{vreg(slot,2*pr+1)+c}, v{vreg(slot,2*pr)+c}, s46")
                a(f"v_perm_b32 v{T+pr*8+2*c+1}, v{vreg(slot,2*pr+1)+c}, v{vreg(slot,2*pr)+c}, s47")
        if reissue: issueV(slot)
        a(f"v_dot2c_f32_bf16 v{Lr}, 0x3f803f80, v{PK}")
        a(f"v_dot2c_f32_bf16 v{Lr}, 0x3f803f80, v{PK+1}")
        for pr in range(2):
            for j in range(8): a(f"v_dot2c_f32_bf16 v{O+j}, v{T+pr*8+j}, v{PK+pr}")

    for s in range(R): process(s, True)
    for s in range(R, R + E): process(s, False)
    nloop = (NG - E) // R - 2
    a(f"s_mov_b32 s45, {nloop}")
    st0 = list(vm.q)
    a.label("L_sloop")
    for s in range(R): process(s, True)
    assert vm.q == st0, (vm.q, st0)
    a("s_sub_u32 s45, s45, 1")
    a("s_cmp_lg_u32 s45, 0")
    a("s_cbranch_scc1 L_sloop")
    for s in range(R): process(s, False)
    if stamp: a("s_memrealtime s[92:93]")
    a(f"v_mov_b32 v{S}, v{M}")
    a(f"v_mov_b32 v{S+1}, v{M}")
    a(f"v_permlane32_swap_b32 v{S}, v{S+1}")
    a(f"v_max_f32 v{S}, v{S}, v{S+1}")
    a(f"v_mov_b32 v{S+1}, v{S}")
    a(f"v_permlane16_swap_b32 v{S}, v{S+1}")
    a(f"v_max_f32 v{MN}, v{S}, v{S+1}")
    a(f"v_sub_f32 v{AL}, v{M}, v{MN}")
    a(f"v_mul_f32 v{AL}, s48, v{AL}")
    a(f"v_exp_f32 v{AL}, v{AL}")
    a("v_and_b32 v2, 15, v0")
    a("v_lshrrev_b32 v3, 4, v0")
    for j in range(0, 8, 2): a(f"v_pk_mul_f32 {vr(O+j,2)}, {vr(O+j,2)}, {vr(AL,2)} op_sel_hi:[1,0]")
    a(f"v_mul_f32 v{Lr}, v{Lr}, v{AL}")
    a(f"v_mul_f32 v{S}, v{Lr}, 1.0")
    a("v_lshlrev_b32 v2, 5, v2")
    a("v_lshl_add_u32 v2, v3, 3, v2")
    a("s_lshl_b32 s35, s3, 9")
    a("v_add_u32 v2, s35, v2")
    def reduce8(b):
        for j in range(4): a(f"v_permlane32_swap_b32 v{b+j}, v{b+j+4}")
        for j in range(0, 4, 2): a(f"v_pk_add_f32 {vr(b+j,2)}, {vr(b+j,2)}, {vr(b+j+4,2)}")
        for j in range(2): a(f"v_permlane16_swap_b32 v{b+j}, v{b+j+2}")
        a(f"v_pk_add_f32 {vr(b,2)}, {vr(b,2)}, {vr(b+2,2)}")
    a(f"v_permlane32_swap_b32 v{Lr}, v{S}")
    reduce8(O)
    a(f"v_add_f32 v{Lr}, v{Lr}, v{S}")
    a(f"ds_write_b64 v2, {vr(O,2)} offset:{L_OPART}")
    a(f"v_mov_b32 v{S}, v{Lr}")
    a("s_lshl_b32 s35, s3, 2")
    a("v_mov_b32 v3, s35")
    a(f"v_permlane16_swap_b32 v{Lr}, v{S}")
    a(f"v_add_f32 v{Lr}, v{Lr}, v{S}")
    a("s_mov_b64 exec, 1")
    a(f"ds_write_b32 v3, v{MN} offset:{L_ML}")
    a(f"ds_write_b32 v3, v{Lr} offset:{L_ML+32}")
    a("s_waitcnt lgkmcnt(0)")
    a("s_barrier")
    if stamp:
        stamp_out(a, NS + NH, add=NH)
    a("s_endpgm")

    a.label("L_helper")
    if prio: a(f"s_setprio {prio}")
    vm = VM(a)
    a("v_and_b32 v2, 15, v0")
    a("v_lshrrev_b32 v3, 4, v0")
    a("s_lshl_b32 s35, s3, 8")
    a("v_lshlrev_b32 v4, 6, v3")
    a("v_add_u32 v4, s35, v4")
    a("v_lshlrev_b32 v5, 18, v3")
    a("v_lshl_add_u32 v5, v2, 4, v5")
    a("s_lshl_b32 s44, s3, 20")
    a("s_lshl_b32 s35, s33, 8")
    a("s_add_u32 s44, s44, s35")
    a("s_lshl_b32 s35, s32, 10")
    a("s_mov_b32 s38, 1024"); a("s_mov_b32 s39, 0x20000")
    a("s_mov_b32 s42, 0x400000"); a("s_mov_b32 s43, 0x20000")
    a("s_waitcnt lgkmcnt(0)")
    a("s_add_u32 s36, s4, s35"); a("s_addc_u32 s37, s5, 0")
    a("s_mov_b32 s40, s10"); a("s_mov_b32 s41, s11")
    XQ = 24
    ACC, ACC2 = 8, 16
    TP = 40
    RING = 56
    WO = 120
    MISC = 248
    NR = 16
    stream = []
    def mkload(srd, voff, soff, imm, post=None):
        def f(dst):
            a(f"buffer_load_dwordx4 {vr(dst)}, {voff}, {srd}, {soff} offen offset:{imm} {wflags}")
            if post: a(post)
        return f
    for i in range(32):
        stream.append(mkload("s[40:43]", "v5", "s44", 0, "s_add_u32 s44, s44, 8192"))
    for p in range(8):
        stream.append(mkload("s[52:55]", "v6", "s49", 0))
        stream.append(mkload("s[52:55]", "v6", "s49", 3584))
        stream.append(mkload("s[56:59]", "v6", "s49", 0))
        stream.append(mkload("s[56:59]", "v6", "s49", 3584, "s_add_u32 s49, s49, 7168"))
    for i in range(16):
        stream.append(mkload("s[60:63]", "v7", "s50", (i % 4) * 1024, "s_add_u32 s50, s50, 4096" if i % 4 == 3 else None))
    for i in range(32):
        stream.append(mkload("s[64:67]", "v1", "s51", (i % 4) * 1024, "s_add_u32 s51, s51, 4096" if i % 4 == 3 else None))
    state = {"issued": 0, "consumed": 0}
    def issue_until(depth):
        while state["issued"] < len(stream) and state["issued"] - state["consumed"] < depth:
            k = state["issued"]
            stream[k](RING + (k % NR) * 4)
            vm.issue(("W", k))
            state["issued"] += 1
    issue_until(2)
    for j in range(4):
        a(f"buffer_load_dwordx4 {vr(XQ+4*j)}, v4, s[36:39], 0 offen offset:{16*j} {xflags}")
        vm.issue("XQ")
    issue_until(Dq)
    a("s_cmp_lt_u32 s33, 28")
    a("s_cselect_b32 s54, 0x1c0000, 0"); a("s_mov_b32 s55, 0x20000")
    a("s_mov_b32 s58, s54"); a("s_mov_b32 s59, 0x20000")
    a("s_mov_b32 s52, s18"); a("s_mov_b32 s53, s19")
    a("s_mov_b32 s56, s20"); a("s_mov_b32 s57, s21")
    a("s_mov_b32 s60, s22"); a("s_mov_b32 s61, s23"); a("s_mov_b32 s62, 0x1c0000"); a("s_mov_b32 s63, 0x20000")
    a("s_mov_b32 s64, s12"); a("s_mov_b32 s65, s13"); a("s_mov_b32 s66, 0x400000"); a("s_mov_b32 s67, 0x20000")
    a("s_mov_b32 s68, s16"); a("s_mov_b32 s69, s17"); a("s_mov_b32 s70, 1024"); a("s_mov_b32 s71, 0x20000")
    a("s_mov_b32 s72, s24"); a("s_mov_b32 s73, s25"); a("s_mov_b32 s74, 1024"); a("s_mov_b32 s75, 0x20000")
    a("s_lshl_b32 s35, s32, 16")
    a("s_add_u32 s76, s30, s35"); a("s_addc_u32 s77, s31, 0"); a("s_mov_b32 s78, 0x10000"); a("s_mov_b32 s79, 0x20000")
    a("s_lshl_b32 s35, s32, 10")
    a("s_add_u32 s80, s26, s35"); a("s_addc_u32 s81, s27, 0"); a("s_mov_b32 s82, 1024"); a("s_mov_b32 s83, 0x20000")
    a("s_mov_b32 s84, s28"); a("s_mov_b32 s85, s29"); a("s_mov_b32 s86, 256"); a("s_mov_b32 s87, 0x20000")
    a(f"s_mul_i32 s49, s3, {128*3584}")
    a("s_lshl_b32 s35, s33, 7")
    a("s_add_u32 s49, s49, s35")
    a("s_lshl_b32 s35, s3, 8")
    a("s_lshl_b32 s50, s33, 16"); a("s_add_u32 s50, s50, s35")
    a("s_lshl_b32 s51, s33, 17"); a("s_add_u32 s51, s51, s35")
    a("v_lshrrev_b32 v6, 3, v0")
    a(f"v_mul_u32_u24 v6, {16*3584}, v6")
    a("v_and_b32 v7, 7, v0")
    a("v_lshl_add_u32 v6, v7, 4, v6")
    a("v_lshlrev_b32 v7, 14, v3")
    a("v_lshl_add_u32 v7, v2, 4, v7")
    a("v_lshlrev_b32 v1, 15, v3")
    a("v_lshl_add_u32 v1, v2, 4, v1")
    for j in range(8): a(f"v_mov_b32 v{ACC+j}, 0")
    a(f"v_mov_b32 v{MISC+5}, {L_CNT}")
    a(f"ds_write_b32 v{MISC+5}, v{ACC}")

    def perm_pair(k, dst):
        r0 = RING + (k % NR) * 4; r1 = RING + ((k + 1) % NR) * 4
        vm.wait(("W", k + 1))
        for c in range(4):
            a(f"v_perm_b32 v{dst+2*c}, v{r1+c}, v{r0+c}, s46")
            a(f"v_perm_b32 v{dst+2*c+1}, v{r1+c}, v{r0+c}, s47")
        state["consumed"] = k + 2
    for p in range(16):
        k = 2 * p
        t = TP + (p % 2) * 8
        perm_pair(k, t)
        if p == 0:
            pass
        issue_until(Dq if k + 2 + Dq <= 32 else Dh)
        if p == 0 and "XQ" in vm.q: vm.wait("XQ")
        for j in range(8): a(f"v_dot2c_f32_bf16 v{ACC+j}, v{t+j}, v{XQ+p}")
    reduce8(ACC)
    a("v_lshlrev_b32 v4, 5, v2")
    a("v_lshl_add_u32 v4, v3, 3, v4")
    a("s_lshl_b32 s35, s3, 9")
    a("v_add_u32 v4, s35, v4")
    a(f"ds_write_b64 v4, {vr(ACC,2)} offset:{L_QPART}")
    a("s_waitcnt lgkmcnt(0)")
    a("s_barrier")
    if stamp: a("s_memrealtime s[90:91]")
    GX, GW, GR = WO, WO + 4, WO + 8
    XF = XQ
    a("v_lshlrev_b32 v4, 4, v0")
    a(f"buffer_load_dwordx4 {vr(GX)}, v4, s[36:39], 0 offen"); vm.issue("G")
    a(f"buffer_load_dwordx4 {vr(GW)}, v4, s[72:75], 0 offen"); vm.issue("G")
    a(f"buffer_load_dwordx4 {vr(GR)}, v4, s[68:71], 0 offen"); vm.issue("G")
    a("v_lshrrev_b32 v4, 3, v0")
    a("v_lshlrev_b32 v4, 5, v4")
    a("s_lshl_b32 s35, s3, 8")
    a(f"buffer_load_dwordx4 {vr(XF)}, v4, s[36:39], s35 offen"); vm.issue("G")
    a(f"buffer_load_dwordx4 {vr(XF+4)}, v4, s[36:39], s35 offen offset:16"); vm.issue("G")
    a("v_lshlrev_b32 v4, 4, v2")
    a("v_lshl_add_u32 v4, v3, 2, v4")
    a(f"buffer_load_dword v{MISC+6}, v4, s[36:39], s35 offen"); vm.issue("G")
    for j in range(16): a(f"v_mov_b32 v{ACC+j}, 0")
    vm.wait("G")
    t = WO + 16
    for c in range(4):
        a(f"v_lshlrev_b32 v{t}, 16, v{GX+c}")
        a(f"v_and_b32 v{t+1}, 0xffff0000, v{GX+c}")
        a(f"v_lshlrev_b32 v{t+2}, 16, v{GW+c}")
        a(f"v_and_b32 v{t+3}, 0xffff0000, v{GW+c}")
        a(f"v_mul_f32 v{t}, v{t}, v{t+2}")
        a(f"v_mul_f32 v{t+1}, v{t+1}, v{t+3}")
        a(f"v_cvt_pk_bf16_f32 v{t+4+c}, v{t}, v{t+1}")
    ZG, ZR = t + 8, t + 9
    a(f"v_mov_b32 v{ZG}, 0"); a(f"v_mov_b32 v{ZR}, 0")
    for c in range(4):
        a(f"v_dot2c_f32_bf16 v{ZG}, 0x3f803f80, v{t+4+c}")
        a(f"v_dot2c_f32_bf16 v{ZR}, v{GX+c}, v{GR+c}")
    for dpp in ("quad_perm:[1,0,3,2]", "quad_perm:[2,3,0,1]", "row_half_mirror", "row_mirror"):
        for z in (ZG, ZR): a(f"v_add_f32_dpp v{z}, v{z}, v{z} {dpp} row_mask:0xf bank_mask:0xf")
    for sw in ("v_permlane32_swap_b32", "v_permlane16_swap_b32"):
        for z in (ZG, ZR): a(f"v_mov_b32 v{z+2}, v{z}")
        for z in (ZG, ZR): a(f"{sw} v{z}, v{z+2}")
        for z in (ZG, ZR): a(f"v_add_f32 v{z}, v{z}, v{z+2}")
    def rnd2(r0, r1, tmp):
        a(f"v_cvt_pk_bf16_f32 v{tmp}, v{r0}, v{r1}")
        a(f"v_lshlrev_b32 v{r0}, 16, v{tmp}")
        a(f"v_and_b32 v{r1}, 0xffff0000, v{tmp}")
    def sigmoid(dst, src):
        a(f"v_mul_f32 v{dst}, {f2u(-LOG2E):#x}, v{src}")
        a(f"v_exp_f32 v{dst}, v{dst}")
        a(f"v_add_f32 v{dst}, 1.0, v{dst}")
        a(f"v_rcp_f32 v{dst}, v{dst}")
    rnd2(ZG, ZR, t)
    sigmoid(ZG, ZG); sigmoid(ZR, ZR)
    rnd2(ZG, ZR, t)
    a(f"v_mov_b32 v{MISC}, v{ZG}")
    a(f"v_sub_f32 v{t+1}, 1.0, v{ZG}")
    a(f"v_cvt_pk_bf16_f32 v{t}, v{t+1}, v{t+1}")
    a(f"v_lshlrev_b32 v{t+1}, 16, v{t}")
    a(f"v_mul_f32 v{MISC+1}, v{t+1}, v{ZR}")
    a("s_cmp_eq_u32 s33, 28")
    a("s_cselect_b32 s35, 1.0, 0")
    a(f"v_mul_f32 v{t+1}, s35, v{t+1}")
    a(f"v_lshlrev_b32 v{MISC+2}, 16, v{MISC+6}")
    a(f"v_and_b32 v{MISC+3}, 0xffff0000, v{MISC+6}")
    a(f"v_mul_f32 v{MISC+2}, v{MISC+2}, v{t+1}")
    a(f"v_mul_f32 v{MISC+3}, v{MISC+3}, v{t+1}")
    for p in range(8):
        for m in range(2):
            k = 32 + 4 * p + 2 * m
            tt = TP + m * 8
            perm_pair(k, tt)
            issue_until(Dh)
            acc = ACC if m == 0 else ACC2
            for j in range(8): a(f"v_dot2c_f32_bf16 v{acc+j}, v{tt+j}, v{XF+p}")
    for j in range(8): a(f"v_permlane32_swap_b32 v{ACC+j}, v{ACC2+j}")
    for j in range(0, 8, 2): a(f"v_pk_add_f32 {vr(ACC+j,2)}, {vr(ACC+j,2)}, {vr(ACC2+j,2)}")
    for j in range(4): a(f"v_permlane16_swap_b32 v{ACC+j}, v{ACC+j+4}")
    for j in range(0, 4, 2): a(f"v_pk_add_f32 {vr(ACC+j,2)}, {vr(ACC+j,2)}, {vr(ACC+j+4,2)}")
    for j in range(4): a(f"v_add_f32_dpp v{ACC+j}, v{ACC+j}, v{ACC+j} row_ror:8 row_mask:0xf bank_mask:0xf")
    a("v_and_b32 v4, 7, v0")
    a("v_lshlrev_b32 v4, 5, v4")
    a(f"v_lshrrev_b32 v{t}, 1, v3")
    a(f"v_lshl_add_u32 v4, v{t}, 8, v4")
    a(f"v_and_b32 v{t}, 1, v3")
    a(f"v_lshl_add_u32 v4, v{t}, 4, v4")
    a("s_lshl_b32 s35, s3, 9")
    a("v_add_u32 v4, s35, v4")
    a(f"ds_write_b128 v4, {vr(ACC)} offset:{L_FPART}")
    a(f"v_mov_b32 v{t}, 1")
    a("s_waitcnt lgkmcnt(0)")
    a("s_mov_b64 exec, 1")
    a(f"ds_add_u32 v{MISC+5}, v{t}")
    a("s_mov_b64 exec, -1")
    a.label("L_fwait")
    a(f"ds_read_b32 v{t}, v{MISC+5}")
    a("s_waitcnt lgkmcnt(0)")
    a(f"v_readfirstlane_b32 s35, v{t}")
    a(f"s_cmp_ge_u32 s35, {NH}")
    a("s_cbranch_scc1 L_fgo")
    a("s_sleep 4")
    a("s_branch L_fwait")
    a.label("L_fgo")
    a("v_and_b32 v4, 7, v0")
    a("v_lshl_add_u32 v4, v3, 3, v4")
    a("v_lshlrev_b32 v4, 3, v4")
    for hw in range(4):
        a(f"ds_read_b64 {vr(t+4*hw,2)}, v4 offset:{L_FPART + hw*512}")
        a(f"ds_read_b64 {vr(t+4*hw+2,2)}, v4 offset:{L_FPART + hw*512 + 256}")
    for j in range(8): a(f"v_mov_b32 v{ACC+j}, 0")
    a("s_waitcnt lgkmcnt(0)")
    for hw in (1, 2, 3):
        a(f"v_pk_add_f32 {vr(t,2)}, {vr(t,2)}, {vr(t+4*hw,2)}")
        a(f"v_pk_add_f32 {vr(t+2,2)}, {vr(t+2,2)}, {vr(t+4*hw+2,2)}")
    rnd2(t, t + 1, t + 4)
    rnd2(t + 2, t + 3, t + 5)
    sigmoid(t + 6, t); sigmoid(t + 7, t + 1)
    a(f"v_mul_f32 v{t}, v{t}, v{t+6}")
    a(f"v_mul_f32 v{t+1}, v{t+1}, v{t+7}")
    rnd2(t, t + 1, t + 4)
    a(f"v_mul_f32 v{t}, v{t}, v{t+2}")
    a(f"v_mul_f32 v{t+1}, v{t+1}, v{t+3}")
    a(f"v_cvt_pk_bf16_f32 v{MISC+4}, v{t}, v{t+1}")
    for p in range(8):
        k = 64 + 2 * p
        tt = TP + (p % 2) * 8
        perm_pair(k, tt)
        issue_until(Dh)
        for j in range(8):
            a(f"v_dot2c_f32_bf16_dpp v{ACC+j}, v{MISC+4}, v{tt+j} row_newbcast:{p} row_mask:0xf bank_mask:0xf")
    reduce8(ACC)
    a(f"v_fmac_f32 v{MISC+2}, v{ACC}, v{MISC+1}")
    a(f"v_fmac_f32 v{MISC+3}, v{ACC+1}, v{MISC+1}")
    for p in range(16):
        k = 80 + 2 * p
        perm_pair(k, WO + 8 * p)
        issue_until(Dh)
    for j in range(8): a(f"v_mov_b32 v{ACC+j}, 0")
    a("v_lshlrev_b32 v4, 3, v0")
    a("v_mov_b32 v5, 0")
    a("s_lshl_b32 s49, s33, 11")
    a("s_lshl_b32 s35, s3, 9")
    a("s_add_u32 s49, s49, s35")
    if stamp: a("s_memrealtime s[92:93]")
    a("s_barrier")
    if stamp: a("s_memrealtime s[94:95]")
    tm, tl, to = TP, TP + 4, TP + 8
    a(f"ds_read_b128 {vr(tm)}, v5 offset:{L_ML}")
    a(f"ds_read_b128 {vr(tl)}, v5 offset:{L_ML+32}")
    for w in range(NS): a(f"ds_read_b64 {vr(to+2*w,2)}, v4 offset:{L_OPART + w*512}")
    a("s_waitcnt lgkmcnt(5)")
    MX = RING
    a(f"v_max3_f32 v{MX}, v{tm}, v{tm+1}, v{tm+2}")
    a(f"v_max_f32 v{MX}, v{MX}, v{tm+3}")
    a(f"v_mul_f32 v{MX}, s48, v{MX}")
    for w in range(NS): a(f"v_fma_f32 v{tm+w}, v{tm+w}, s48, -v{MX}")
    for w in range(NS): a(f"v_exp_f32 v{tm+w}, v{tm+w}")
    a("s_waitcnt lgkmcnt(0)")
    a(f"v_mul_f32 v{MX+1}, v{tm}, v{tl}")
    a(f"v_mul_f32 v{MX+2}, v{tm}, v{to}")
    a(f"v_mul_f32 v{MX+3}, v{tm}, v{to+1}")
    for w in range(1, NS):
        a(f"v_fmac_f32 v{MX+1}, v{tm+w}, v{tl+w}")
        a(f"v_fmac_f32 v{MX+2}, v{tm+w}, v{to+2*w}")
        a(f"v_fmac_f32 v{MX+3}, v{tm+w}, v{to+2*w+1}")
    a(f"v_rcp_f32 v{MX+1}, v{MX+1}")
    a(f"v_mul_f32 v{MX+2}, v{MX+2}, v{MX+1}")
    a(f"v_mul_f32 v{MX+3}, v{MX+3}, v{MX+1}")
    a(f"v_cvt_pk_bf16_f32 v{MISC+4}, v{MX+2}, v{MX+3}")
    for p in range(16):
        for j in range(8):
            a(f"v_dot2c_f32_bf16_dpp v{ACC+j}, v{MISC+4}, v{WO+8*p+j} row_newbcast:{p} row_mask:0xf bank_mask:0xf")
    reduce8(ACC)
    a(f"v_fmac_f32 v{MISC+2}, v{ACC}, v{MISC}")
    a(f"v_fmac_f32 v{MISC+3}, v{ACC+1}, v{MISC}")
    a(f"buffer_store_dwordx2 {vr(MISC+2,2)}, v4, s[76:79], s49 offen sc1")
    if stamp: a("s_memrealtime s[96:97]")
    a("s_waitcnt vmcnt(0)")
    if final == "wg":
        a("s_barrier")
        a("s_cmp_lg_u32 s3, 0")
        a("s_cbranch_scc1 L_watom")
        a("s_lshl_b32 s35, s32, 5")
        a("v_mov_b32 v6, 1")
        a("s_mov_b64 exec, 1")
        a("buffer_atomic_add v6, v5, s[84:87], s35 offen sc0 sc1")
        a("s_waitcnt vmcnt(0)")
        a(f"ds_write_b32 v5, v6 offset:{L_FLAG}")
        a("s_waitcnt lgkmcnt(0)")
        a("s_mov_b64 exec, -1")
        a.label("L_watom")
        a("s_barrier")
        a(f"ds_read_b32 v6, v5 offset:{L_FLAG}")
        a("s_waitcnt lgkmcnt(0)")
        a("v_readfirstlane_b32 s35, v6")
        a("s_cmp_lg_u32 s35, 31")
    else:
        a("s_lshl_b32 s35, s32, 5")
        a("s_lshl_b32 s50, s3, 3")
        a("s_add_u32 s35, s35, s50")
        a("v_mov_b32 v6, 1")
        a("s_mov_b64 exec, 1")
        a("buffer_atomic_add v6, v5, s[84:87], s35 offen sc0 sc1")
        a("s_waitcnt vmcnt(0)")
        a("s_mov_b64 exec, -1")
        a("v_readfirstlane_b32 s35, v6")
        a("s_cmp_lg_u32 s35, 31")
    if stamp: a("s_memrealtime s[98:99]")
    a("s_cbranch_scc1 L_hend")
    a("v_and_b32 v6, 31, v0")
    a("v_lshlrev_b32 v6, 4, v6")
    a("v_lshrrev_b32 v7, 5, v0")
    a("v_lshl_add_u32 v6, v7, 11, v6")
    a("s_lshl_b32 s35, s3, 9")
    for k in range(16):
        a(f"buffer_load_dwordx4 {vr(WO+4*k)}, v6, s[76:79], s35 offen sc1")
        a("s_add_u32 s35, s35, 4096")
    a("v_and_b32 v6, 31, v0")
    a("v_lshrrev_b32 v7, 3, v6")
    a("v_and_b32 v6, 7, v6")
    a("v_lshlrev_b32 v6, 5, v6")
    a("v_lshl_add_u32 v6, v7, 2, v6")
    a("s_lshl_b32 s35, s3, 8")
    for k in range(1, 16):
        a(f"s_waitcnt vmcnt({15-k})")
        a(f"v_pk_add_f32 {vr(WO,2)}, {vr(WO,2)}, {vr(WO+4*k,2)}")
        a(f"v_pk_add_f32 {vr(WO+2,2)}, {vr(WO+2,2)}, {vr(WO+4*k+2,2)}")
    a(f"v_permlane32_swap_b32 v{WO}, v{WO+2}")
    a(f"v_permlane32_swap_b32 v{WO+1}, v{WO+3}")
    a(f"v_pk_add_f32 {vr(WO,2)}, {vr(WO,2)}, {vr(WO+2,2)}")
    a("v_lshrrev_b32 v7, 5, v0")
    a("v_lshl_add_u32 v6, v7, 4, v6")
    a(f"v_cvt_pk_bf16_f32 v{WO}, v{WO}, v{WO+1}")
    a(f"buffer_store_dword v{WO}, v6, s[80:83], s35 offen")
    a.label("L_hend")
    if stamp:
        a("s_waitcnt vmcnt(0)")
        a("s_memrealtime s[100:101]")
        stamp_out(a, NS + NH, add=0, helper=True)
    a.label("L_done")
    a("s_endpgm")
    a.pad()
    hdr = HEADER.replace("@@LAUNCH@@", f"; @launch grid=(256,1,1) block=({(NS+NH)*64},1,1) lds={LDS_BYTES}")
    body = a.text()
    tail = f""".section .rodata,"a"
.p2align 6
.amdhsa_kernel {KN}
  .amdhsa_next_free_vgpr 256
  .amdhsa_next_free_sgpr 102
  .amdhsa_accum_offset 256
  .amdhsa_group_segment_fixed_size 0
  .amdhsa_kernarg_size 112
  .amdhsa_user_sgpr_count 2
  .amdhsa_user_sgpr_kernarg_segment_ptr 1
  .amdhsa_system_sgpr_workgroup_id_x 1
.end_amdhsa_kernel
"""
    return hdr + body + tail

def stamp_out(a, NW, add=0, helper=False):
    a("s_mov_b64 exec, 1")
    a("s_getreg_b32 s35, hwreg(HW_REG_XCC_ID)")
    a("s_waitcnt lgkmcnt(0)")
    regs = [88, 90, 92] + ([94, 96, 98, 100] if helper else [92, 92, 92, 92])
    for i, r in enumerate(regs): a(f"v_mov_b32 v{8+i}, s{r}")
    a("v_mov_b32 v15, s35")
    a(f"s_mul_i32 s35, s2, {NW}")
    a("s_add_u32 s35, s35, s3")
    if add: a(f"s_add_u32 s35, s35, {add}")
    a("s_lshl_b32 s35, s35, 5")
    a("s_add_u32 s35, s35, 0x100000")
    a("v_mov_b32 v3, s35")
    a("global_store_dwordx4 v3, v[8:11], s[30:31]")
    a("global_store_dwordx4 v3, v[12:15], s[30:31] offset:16")
    a("s_waitcnt vmcnt(0)")

if __name__ == "__main__":
    import json
    out = sys.argv[1]
    kw = {}
    for s in sys.argv[2:]:
        k, v = s.split("=")
        try: v = int(v)
        except ValueError: v = v.replace("+", " ")
        kw[k] = v
    open(out, "w").write(gen(**kw))
```

```python
import sys, os, math, struct
sys.path.insert(0, os.path.dirname(os.path.abspath(__file__)))
from asmlib import Asm
KN = "gated_mix__mha_block_cached__moe_arch_mod__decode_kernel"

HEADER = open(os.path.join(os.path.dirname(os.path.abspath(__file__)), "header.txt")).read()

def f2u(x):
    return struct.unpack("<I", struct.pack("<f", x))[0]

LOG2E = 1.4426950408889634
CSCALE = LOG2E * (128 ** -0.5)

L_QPART = 0
L_FPART = 2048
L_OPART = 4096
L_ML    = 8192
L_CNT   = 8320
L_FLAG  = 8324
LDS_BYTES = 8448

class VM:
    def __init__(self, a): self.a = a; self.q = []; self.seen = set()
    def issue(self, tag): self.q.append(tag); self.seen.add(tag)
    def wait(self, tag):
        assert tag in self.seen, tag
        if tag not in self.q: return
        idx = max(i for i, t in enumerate(self.q) if t == tag)
        n = len(self.q) - 1 - idx
        assert n <= 63
        self.a(f"s_waitcnt vmcnt({n})")
        self.q = self.q[idx+1:]
    def waitall(self):
        self.a("s_waitcnt vmcnt(0)"); self.q = []

def vr(b, n=4): return f"v[{b}:{b+n-1}]"

def gen(R=2, E=4, Dq=6, Dh=4, wflags="", kvflags="nt", stamp=False, final="wg", prio=0, mapmode=0, xflags="", reps=1, kflags=None, vflags=None):
    if kflags is None: kflags = kvflags
    if vflags is None: vflags = kvflags
    NS, NH = 4, 4
    a = Asm()
    NG = 64 * reps
    assert (NG - E) % R == 0
    a(f"s_cmp_ge_u32 s2, 256")
    a("s_cbranch_scc1 L_done")
    a("s_load_dwordx16 s[4:19], s[0:1], 0")
    a("s_load_dwordx8 s[20:27], s[0:1], 64")
    a("s_load_dwordx4 s[28:31], s[0:1], 96")
    if stamp: a("s_memrealtime s[88:89]")
    a("v_lshrrev_b32 v1, 6, v0")
    a("v_and_b32 v0, 63, v0")
    a("v_readfirstlane_b32 s3, v1")
    if mapmode == 0:
        a("s_and_b32 s33, s2, 7")
        a("s_lshl_b32 s33, s33, 2")
        a("s_lshr_b32 s32, s2, 3")
        a("s_and_b32 s34, s32, 3")
        a("s_add_u32 s33, s33, s34")
        a("s_lshr_b32 s32, s32, 2")
    elif mapmode == 1:
        a("s_and_b32 s33, s2, 7")
        a("s_lshl_b32 s33, s33, 2")
        a("s_lshr_b32 s32, s2, 3")
        a("s_lshr_b32 s34, s32, 3")
        a("s_add_u32 s33, s33, s34")
        a("s_and_b32 s32, s32, 7")
    elif mapmode == 2:
        a("s_and_b32 s33, s2, 31")
        a("s_lshr_b32 s32, s2, 5")
    a("s_lshl_b32 s34, s32, 5")
    a("s_add_u32 s34, s34, s33")
    a("s_mov_b32 s46, 0x05040100")
    a("s_mov_b32 s47, 0x07060302")
    a(f"s_mov_b32 s48, {f2u(CSCALE):#x}")
    a(f"s_cmp_lt_u32 s3, {NH}")
    a("s_cbranch_scc1 L_helper")

    vm = VM(a)
    a(f"s_sub_u32 s3, s3, {NH}")
    a("s_lshl_b32 s35, s3, 12")
    a("v_lshlrev_b32 v1, 4, v0")
    a("v_add_u32 v1, s35, v1")
    a("s_lshl_b32 s35, s34, 20")
    a("s_mov_b32 s38, 0x100000")
    a("s_mov_b32 s39, 0x20000")
    a("s_mov_b32 s42, 0x100000")
    a("s_mov_b32 s43, 0x20000")
    a("s_mov_b32 s44, 0")
    a("s_waitcnt lgkmcnt(0)")
    a("s_add_u32 s36, s6, s35")
    a("s_addc_u32 s37, s7, 0")
    a("s_add_u32 s40, s8, s35")
    a("s_addc_u32 s41, s9, 0")
    BUF = 48
    Q, O, M, Lr, S, P, PK, AL, MC, MN, T = 4, 8, 16, 17, 18, 22, 26, 28, 30, 31, 32
    def kreg(slot, i): return BUF + slot * 32 + i * 4
    def vreg(slot, i): return BUF + slot * 32 + 16 + i * 4
    def issueK(slot):
        for i in range(4):
            a(f"buffer_load_dwordx4 {vr(kreg(slot,i))}, v1, s[36:39], s44 offen offset:{i*1024} {kflags}")
            vm.issue(("K", slot))
    def issueV(slot):
        for i in range(4):
            a(f"buffer_load_dwordx4 {vr(vreg(slot,i))}, v1, s[40:43], s44 offen offset:{i*1024} {vflags}")
            vm.issue(("V", slot))
        a(f"s_add_u32 s44, s44, {NS*4096}")
        if reps > 1: a("s_and_b32 s44, s44, 0xfffff")
    for s in range(R + E):
        issueK(s); issueV(s)
    a(f"v_mov_b32 v{M}, 0xff800000")
    a(f"v_mov_b32 v{Lr}, 0")
    for j in range(8): a(f"v_mov_b32 v{O+j}, 0")
    a("v_and_b32 v2, 15, v0")
    a("v_lshlrev_b32 v2, 5, v2")
    a("s_barrier")
    if stamp: a("s_memrealtime s[90:91]")
    TQ = [32, 40, 240, 248]
    for hw in range(4):
        a(f"ds_read_b128 {vr(TQ[hw])}, v2 offset:{L_QPART + hw*512}")
        a(f"ds_read_b128 {vr(TQ[hw]+4)}, v2 offset:{L_QPART + hw*512 + 16}")
    a("s_waitcnt lgkmcnt(4)")
    for j in range(0, 8, 2): a(f"v_pk_add_f32 {vr(32+j,2)}, {vr(32+j,2)}, {vr(40+j,2)}")
    a("s_waitcnt lgkmcnt(0)")
    for j in range(0, 8, 2): a(f"v_pk_add_f32 {vr(240+j,2)}, {vr(240+j,2)}, {vr(248+j,2)}")
    for j in range(0, 8, 2): a(f"v_pk_add_f32 {vr(32+j,2)}, {vr(32+j,2)}, {vr(240+j,2)}")
    for j in range(4): a(f"v_cvt_pk_bf16_f32 v{Q+j}, v{32+2*j}, v{33+2*j}")

    def process(slot, reissue):
        vm.wait(("K", slot))
        for i in range(4): a(f"v_dot2_f32_bf16 v{S+i}, v{kreg(slot,i)}, v{Q}, 0")
        for c in range(1, 4):
            for i in range(4): a(f"v_dot2c_f32_bf16 v{S+i}, v{kreg(slot,i)+c}, v{Q+c}")
        if reissue: issueK(slot)
        for dpp in ("quad_perm:[1,0,3,2]", "quad_perm:[2,3,0,1]", "row_half_mirror", "row_mirror"):
            for i in range(4): a(f"v_add_f32_dpp v{S+i}, v{S+i}, v{S+i} {dpp} row_mask:0xf bank_mask:0xf")
        a(f"v_max3_f32 v{MN}, v{S}, v{S+1}, v{M}")
        a(f"v_max3_f32 v{MN}, v{S+2}, v{S+3}, v{MN}")
        a(f"v_mul_f32 v{MC}, s48, v{MN}")
        a(f"v_fma_f32 v{AL}, v{M}, s48, -v{MC}")
        for i in range(4): a(f"v_fma_f32 v{P+i}, v{S+i}, s48, -v{MC}")
        a(f"v_exp_f32 v{AL}, v{AL}")
        for i in range(4): a(f"v_exp_f32 v{P+i}, v{P+i}")
        a(f"v_mov_b32 v{M}, v{MN}")
        for j in range(0, 8, 2): a(f"v_pk_mul_f32 {vr(O+j,2)}, {vr(O+j,2)}, {vr(AL,2)} op_sel_hi:[1,0]")
        a(f"v_mul_f32 v{Lr}, v{Lr}, v{AL}")
        a(f"v_cvt_pk_bf16_f32 v{PK}, v{P}, v{P+1}")
        a(f"v_cvt_pk_bf16_f32 v{PK+1}, v{P+2}, v{P+3}")
        vm.wait(("V", slot))
        for pr in range(2):
            for c in range(4):
                a(f"v_perm_b32 v{T+pr*8+2*c}, v{vreg(slot,2*pr+1)+c}, v{vreg(slot,2*pr)+c}, s46")
                a(f"v_perm_b32 v{T+pr*8+2*c+1}, v{vreg(slot,2*pr+1)+c}, v{vreg(slot,2*pr)+c}, s47")
        if reissue: issueV(slot)
        a(f"v_dot2c_f32_bf16 v{Lr}, 0x3f803f80, v{PK}")
        a(f"v_dot2c_f32_bf16 v{Lr}, 0x3f803f80, v{PK+1}")
        for pr in range(2):
            for j in range(8): a(f"v_dot2c_f32_bf16 v{O+j}, v{T+pr*8+j}, v{PK+pr}")

    for s in range(R): process(s, True)
    for s in range(R, R + E): process(s, False)
    nloop = (NG - E) // R - 2
    a(f"s_mov_b32 s45, {nloop}")
    st0 = list(vm.q)
    a.label("L_sloop")
    for s in range(R): process(s, True)
    assert vm.q == st0, (vm.q, st0)
    a("s_sub_u32 s45, s45, 1")
    a("s_cmp_lg_u32 s45, 0")
    a("s_cbranch_scc1 L_sloop")
    for s in range(R): process(s, False)
    if stamp: a("s_memrealtime s[92:93]")
    a(f"v_mov_b32 v{S}, v{M}")
    a(f"v_mov_b32 v{S+1}, v{M}")
    a(f"v_permlane32_swap_b32 v{S}, v{S+1}")
    a(f"v_max_f32 v{S}, v{S}, v{S+1}")
    a(f"v_mov_b32 v{S+1}, v{S}")
    a(f"v_permlane16_swap_b32 v{S}, v{S+1}")
    a(f"v_max_f32 v{MN}, v{S}, v{S+1}")
    a(f"v_sub_f32 v{AL}, v{M}, v{MN}")
    a(f"v_mul_f32 v{AL}, s48, v{AL}")
    a(f"v_exp_f32 v{AL}, v{AL}")
    a("v_and_b32 v2, 15, v0")
    a("v_lshrrev_b32 v3, 4, v0")
    for j in range(0, 8, 2): a(f"v_pk_mul_f32 {vr(O+j,2)}, {vr(O+j,2)}, {vr(AL,2)} op_sel_hi:[1,0]")
    a(f"v_mul_f32 v{Lr}, v{Lr}, v{AL}")
    a(f"v_mul_f32 v{S}, v{Lr}, 1.0")
    a("v_lshlrev_b32 v2, 5, v2")
    a("v_lshl_add_u32 v2, v3, 3, v2")
    a("s_lshl_b32 s35, s3, 9")
    a("v_add_u32 v2, s35, v2")
    def reduce8(b):
        for j in range(4): a(f"v_permlane32_swap_b32 v{b+j}, v{b+j+4}")
        for j in range(0, 4, 2): a(f"v_pk_add_f32 {vr(b+j,2)}, {vr(b+j,2)}, {vr(b+j+4,2)}")
        for j in range(2): a(f"v_permlane16_swap_b32 v{b+j}, v{b+j+2}")
        a(f"v_pk_add_f32 {vr(b,2)}, {vr(b,2)}, {vr(b+2,2)}")
    a(f"v_permlane32_swap_b32 v{Lr}, v{S}")
    reduce8(O)
    a(f"v_add_f32 v{Lr}, v{Lr}, v{S}")
    a(f"ds_write_b64 v2, {vr(O,2)} offset:{L_OPART}")
    a(f"v_mov_b32 v{S}, v{Lr}")
    a("s_lshl_b32 s35, s3, 2")
    a("v_mov_b32 v3, s35")
    a(f"v_permlane16_swap_b32 v{Lr}, v{S}")
    a(f"v_add_f32 v{Lr}, v{Lr}, v{S}")
    a("s_mov_b64 exec, 1")
    a(f"ds_write_b32 v3, v{MN} offset:{L_ML}")
    a(f"ds_write_b32 v3, v{Lr} offset:{L_ML+32}")
    a("s_waitcnt lgkmcnt(0)")
    a("s_barrier")
    if stamp:
        stamp_out(a, NS + NH, add=NH)
    a("s_endpgm")

    a.label("L_helper")
    if prio: a(f"s_setprio {prio}")
    vm = VM(a)
    a("v_and_b32 v2, 15, v0")
    a("v_lshrrev_b32 v3, 4, v0")
    a("s_lshl_b32 s35, s3, 8")
    a("v_lshlrev_b32 v4, 6, v3")
    a("v_add_u32 v4, s35, v4")
    a("v_lshlrev_b32 v5, 18, v3")
    a("v_lshl_add_u32 v5, v2, 4, v5")
    a("s_lshl_b32 s44, s3, 20")
    a("s_lshl_b32 s35, s33, 8")
    a("s_add_u32 s44, s44, s35")
    a("s_lshl_b32 s35, s32, 10")
    a("s_mov_b32 s38, 1024"); a("s_mov_b32 s39, 0x20000")
    a("s_mov_b32 s42, 0x400000"); a("s_mov_b32 s43, 0x20000")
    a("s_waitcnt lgkmcnt(0)")
    a("s_add_u32 s36, s4, s35"); a("s_addc_u32 s37, s5, 0")
    a("s_mov_b32 s40, s10"); a("s_mov_b32 s41, s11")
    XQ = 24
    ACC, ACC2 = 8, 16
    TP = 40
    RING = 56
    WO = 120
    MISC = 248
    NR = 16
    stream = []
    def mkload(srd, voff, soff, imm, post=None):
        def f(dst):
            a(f"buffer_load_dwordx4 {vr(dst)}, {voff}, {srd}, {soff} offen offset:{imm} {wflags}")
            if post: a(post)
        return f
    for i in range(32):
        stream.append(mkload("s[40:43]", "v5", "s44", 0, "s_add_u32 s44, s44, 8192"))
    for p in range(8):
        stream.append(mkload("s[52:55]", "v6", "s49", 0))
        stream.append(mkload("s[52:55]", "v6", "s49", 3584))
        stream.append(mkload("s[56:59]", "v6", "s49", 0))
        stream.append(mkload("s[56:59]", "v6", "s49", 3584, "s_add_u32 s49, s49, 7168"))
    for i in range(16):
        stream.append(mkload("s[60:63]", "v7", "s50", (i % 4) * 1024, "s_add_u32 s50, s50, 4096" if i % 4 == 3 else None))
    for i in range(32):
        stream.append(mkload("s[64:67]", "v1", "s51", (i % 4) * 1024, "s_add_u32 s51, s51, 4096" if i % 4 == 3 else None))
    state = {"issued": 0, "consumed": 0}
    def issue_until(depth):
        while state["issued"] < len(stream) and state["issued"] - state["consumed"] < depth:
            k = state["issued"]
            stream[k](RING + (k % NR) * 4)
            vm.issue(("W", k))
            state["issued"] += 1
    issue_until(2)
    for j in range(4):
        a(f"buffer_load_dwordx4 {vr(XQ+4*j)}, v4, s[36:39], 0 offen offset:{16*j} {xflags}")
        vm.issue("XQ")
    issue_until(Dq)
    a("s_cmp_lt_u32 s33, 28")
    a("s_cselect_b32 s54, 0x1c0000, 0"); a("s_mov_b32 s55, 0x20000")
    a("s_mov_b32 s58, s54"); a("s_mov_b32 s59, 0x20000")
    a("s_mov_b32 s52, s18"); a("s_mov_b32 s53, s19")
    a("s_mov_b32 s56, s20"); a("s_mov_b32 s57, s21")
    a("s_mov_b32 s60, s22"); a("s_mov_b32 s61, s23"); a("s_mov_b32 s62, 0x1c0000"); a("s_mov_b32 s63, 0x20000")
    a("s_mov_b32 s64, s12"); a("s_mov_b32 s65, s13"); a("s_mov_b32 s66, 0x400000"); a("s_mov_b32 s67, 0x20000")
    a("s_mov_b32 s68, s16"); a("s_mov_b32 s69, s17"); a("s_mov_b32 s70, 1024"); a("s_mov_b32 s71, 0x20000")
    a("s_mov_b32 s72, s24"); a("s_mov_b32 s73, s25"); a("s_mov_b32 s74, 1024"); a("s_mov_b32 s75, 0x20000")
    a("s_lshl_b32 s35, s32, 16")
    a("s_add_u32 s76, s30, s35"); a("s_addc_u32 s77, s31, 0"); a("s_mov_b32 s78, 0x10000"); a("s_mov_b32 s79, 0x20000")
    a("s_lshl_b32 s35, s32, 10")
    a("s_add_u32 s80, s26, s35"); a("s_addc_u32 s81, s27, 0"); a("s_mov_b32 s82, 1024"); a("s_mov_b32 s83, 0x20000")
    a("s_mov_b32 s84, s28"); a("s_mov_b32 s85, s29"); a("s_mov_b32 s86, 256"); a("s_mov_b32 s87, 0x20000")
    a(f"s_mul_i32 s49, s3, {128*3584}")
    a("s_lshl_b32 s35, s33, 7")
    a("s_add_u32 s49, s49, s35")
    a("s_lshl_b32 s35, s3, 8")
    a("s_lshl_b32 s50, s33, 16"); a("s_add_u32 s50, s50, s35")
    a("s_lshl_b32 s51, s33, 17"); a("s_add_u32 s51, s51, s35")
    a("v_lshrrev_b32 v6, 3, v0")
    a(f"v_mul_u32_u24 v6, {16*3584}, v6")
    a("v_and_b32 v7, 7, v0")
    a("v_lshl_add_u32 v6, v7, 4, v6")
    a("v_lshlrev_b32 v7, 14, v3")
    a("v_lshl_add_u32 v7, v2, 4, v7")
    a("v_lshlrev_b32 v1, 15, v3")
    a("v_lshl_add_u32 v1, v2, 4, v1")
    for j in range(8): a(f"v_mov_b32 v{ACC+j}, 0")
    a(f"v_mov_b32 v{MISC+5}, {L_CNT}")
    a(f"ds_write_b32 v{MISC+5}, v{ACC}")

    def perm_pair(k, dst):
        r0 = RING + (k % NR) * 4; r1 = RING + ((k + 1) % NR) * 4
        vm.wait(("W", k + 1))
        for c in range(4):
            a(f"v_perm_b32 v{dst+2*c}, v{r1+c}, v{r0+c}, s46")
            a(f"v_perm_b32 v{dst+2*c+1}, v{r1+c}, v{r0+c}, s47")
        state["consumed"] = k + 2
    for p in range(16):
        k = 2 * p
        t = TP + (p % 2) * 8
        perm_pair(k, t)
        if p == 0:
            pass
        issue_until(Dq if k + 2 + Dq <= 32 else Dh)
        if p == 0 and "XQ" in vm.q: vm.wait("XQ")
        for j in range(8): a(f"v_dot2c_f32_bf16 v{ACC+j}, v{t+j}, v{XQ+p}")
    reduce8(ACC)
    a("v_lshlrev_b32 v4, 5, v2")
    a("v_lshl_add_u32 v4, v3, 3, v4")
    a("s_lshl_b32 s35, s3, 9")
    a("v_add_u32 v4, s35, v4")
    a(f"ds_write_b64 v4, {vr(ACC,2)} offset:{L_QPART}")
    a("s_waitcnt lgkmcnt(0)")
    a("s_barrier")
    if stamp: a("s_memrealtime s[90:91]")
    GX, GW, GR = WO, WO + 4, WO + 8
    XF = XQ
    a("v_lshlrev_b32 v4, 4, v0")
    a(f"buffer_load_dwordx4 {vr(GX)}, v4, s[36:39], 0 offen"); vm.issue("G")
    a(f"buffer_load_dwordx4 {vr(GW)}, v4, s[72:75], 0 offen"); vm.issue("G")
    a(f"buffer_load_dwordx4 {vr(GR)}, v4, s[68:71], 0 offen"); vm.issue("G")
    a("v_lshrrev_b32 v4, 3, v0")
    a("v_lshlrev_b32 v4, 5, v4")
    a("s_lshl_b32 s35, s3, 8")
    a(f"buffer_load_dwordx4 {vr(XF)}, v4, s[36:39], s35 offen"); vm.issue("G")
    a(f"buffer_load_dwordx4 {vr(XF+4)}, v4, s[36:39], s35 offen offset:16"); vm.issue("G")
    a("v_lshlrev_b32 v4, 4, v2")
    a("v_lshl_add_u32 v4, v3, 2, v4")
    a(f"buffer_load_dword v{MISC+6}, v4, s[36:39], s35 offen"); vm.issue("G")
    for j in range(16): a(f"v_mov_b32 v{ACC+j}, 0")
    vm.wait("G")
    t = WO + 16
    for c in range(4):
        a(f"v_lshlrev_b32 v{t}, 16, v{GX+c}")
        a(f"v_and_b32 v{t+1}, 0xffff0000, v{GX+c}")
        a(f"v_lshlrev_b32 v{t+2}, 16, v{GW+c}")
        a(f"v_and_b32 v{t+3}, 0xffff0000, v{GW+c}")
        a(f"v_mul_f32 v{t}, v{t}, v{t+2}")
        a(f"v_mul_f32 v{t+1}, v{t+1}, v{t+3}")
        a(f"v_cvt_pk_bf16_f32 v{t+4+c}, v{t}, v{t+1}")
    ZG, ZR = t + 8, t + 9
    a(f"v_mov_b32 v{ZG}, 0"); a(f"v_mov_b32 v{ZR}, 0")
    for c in range(4):
        a(f"v_dot2c_f32_bf16 v{ZG}, 0x3f803f80, v{t+4+c}")
        a(f"v_dot2c_f32_bf16 v{ZR}, v{GX+c}, v{GR+c}")
    for dpp in ("quad_perm:[1,0,3,2]", "quad_perm:[2,3,0,1]", "row_half_mirror", "row_mirror"):
        for z in (ZG, ZR): a(f"v_add_f32_dpp v{z}, v{z}, v{z} {dpp} row_mask:0xf bank_mask:0xf")
    for sw in ("v_permlane32_swap_b32", "v_permlane16_swap_b32"):
        for z in (ZG, ZR): a(f"v_mov_b32 v{z+2}, v{z}")
        for z in (ZG, ZR): a(f"{sw} v{z}, v{z+2}")
        for z in (ZG, ZR): a(f"v_add_f32 v{z}, v{z}, v{z+2}")
    def rnd2(r0, r1, tmp):
        a(f"v_cvt_pk_bf16_f32 v{tmp}, v{r0}, v{r1}")
        a(f"v_lshlrev_b32 v{r0}, 16, v{tmp}")
        a(f"v_and_b32 v{r1}, 0xffff0000, v{tmp}")
    def sigmoid(dst, src):
        a(f"v_mul_f32 v{dst}, {f2u(-LOG2E):#x}, v{src}")
        a(f"v_exp_f32 v{dst}, v{dst}")
        a(f"v_add_f32 v{dst}, 1.0, v{dst}")
        a(f"v_rcp_f32 v{dst}, v{dst}")
    rnd2(ZG, ZR, t)
    sigmoid(ZG, ZG); sigmoid(ZR, ZR)
    rnd2(ZG, ZR, t)
    a(f"v_mov_b32 v{MISC}, v{ZG}")
    a(f"v_sub_f32 v{t+1}, 1.0, v{ZG}")
    a(f"v_cvt_pk_bf16_f32 v{t}, v{t+1}, v{t+1}")
    a(f"v_lshlrev_b32 v{t+1}, 16, v{t}")
    a(f"v_mul_f32 v{MISC+1}, v{t+1}, v{ZR}")
    a("s_cmp_eq_u32 s33, 28")
    a("s_cselect_b32 s35, 1.0, 0")
    a(f"v_mul_f32 v{t+1}, s35, v{t+1}")
    a(f"v_lshlrev_b32 v{MISC+2}, 16, v{MISC+6}")
    a(f"v_and_b32 v{MISC+3}, 0xffff0000, v{MISC+6}")
    a(f"v_mul_f32 v{MISC+2}, v{MISC+2}, v{t+1}")
    a(f"v_mul_f32 v{MISC+3}, v{MISC+3}, v{t+1}")
    for p in range(8):
        for m in range(2):
            k = 32 + 4 * p + 2 * m
            tt = TP + m * 8
            perm_pair(k, tt)
            issue_until(Dh)
            acc = ACC if m == 0 else ACC2
            for j in range(8): a(f"v_dot2c_f32_bf16 v{acc+j}, v{tt+j}, v{XF+p}")
    for j in range(8): a(f"v_permlane32_swap_b32 v{ACC+j}, v{ACC2+j}")
    for j in range(0, 8, 2): a(f"v_pk_add_f32 {vr(ACC+j,2)}, {vr(ACC+j,2)}, {vr(ACC2+j,2)}")
    for j in range(4): a(f"v_permlane16_swap_b32 v{ACC+j}, v{ACC+j+4}")
    for j in range(0, 4, 2): a(f"v_pk_add_f32 {vr(ACC+j,2)}, {vr(ACC+j,2)}, {vr(ACC+j+4,2)}")
    for j in range(4): a(f"v_add_f32_dpp v{ACC+j}, v{ACC+j}, v{ACC+j} row_ror:8 row_mask:0xf bank_mask:0xf")
    a("v_and_b32 v4, 7, v0")
    a("v_lshlrev_b32 v4, 5, v4")
    a(f"v_lshrrev_b32 v{t}, 1, v3")
    a(f"v_lshl_add_u32 v4, v{t}, 8, v4")
    a(f"v_and_b32 v{t}, 1, v3")
    a(f"v_lshl_add_u32 v4, v{t}, 4, v4")
    a("s_lshl_b32 s35, s3, 9")
    a("v_add_u32 v4, s35, v4")
    a(f"ds_write_b128 v4, {vr(ACC)} offset:{L_FPART}")
    a(f"v_mov_b32 v{t}, 1")
    a("s_waitcnt lgkmcnt(0)")
    a("s_mov_b64 exec, 1")
    a(f"ds_add_u32 v{MISC+5}, v{t}")
    a("s_mov_b64 exec, -1")
    a.label("L_fwait")
    a(f"ds_read_b32 v{t}, v{MISC+5}")
    a("s_waitcnt lgkmcnt(0)")
    a(f"v_readfirstlane_b32 s35, v{t}")
    a(f"s_cmp_ge_u32 s35, {NH}")
    a("s_cbranch_scc1 L_fgo")
    a("s_sleep 4")
    a("s_branch L_fwait")
    a.label("L_fgo")
    a("v_and_b32 v4, 7, v0")
    a("v_lshl_add_u32 v4, v3, 3, v4")
    a("v_lshlrev_b32 v4, 3, v4")
    for hw in range(4):
        a(f"ds_read_b64 {vr(t+4*hw,2)}, v4 offset:{L_FPART + hw*512}")
        a(f"ds_read_b64 {vr(t+4*hw+2,2)}, v4 offset:{L_FPART + hw*512 + 256}")
    for j in range(8): a(f"v_mov_b32 v{ACC+j}, 0")
    a("s_waitcnt lgkmcnt(0)")
    for hw in (1, 2, 3):
        a(f"v_pk_add_f32 {vr(t,2)}, {vr(t,2)}, {vr(t+4*hw,2)}")
        a(f"v_pk_add_f32 {vr(t+2,2)}, {vr(t+2,2)}, {vr(t+4*hw+2,2)}")
    rnd2(t, t + 1, t + 4)
    rnd2(t + 2, t + 3, t + 5)
    sigmoid(t + 6, t); sigmoid(t + 7, t + 1)
    a(f"v_mul_f32 v{t}, v{t}, v{t+6}")
    a(f"v_mul_f32 v{t+1}, v{t+1}, v{t+7}")
    rnd2(t, t + 1, t + 4)
    a(f"v_mul_f32 v{t}, v{t}, v{t+2}")
    a(f"v_mul_f32 v{t+1}, v{t+1}, v{t+3}")
    a(f"v_cvt_pk_bf16_f32 v{MISC+4}, v{t}, v{t+1}")
    for p in range(8):
        k = 64 + 2 * p
        tt = TP + (p % 2) * 8
        perm_pair(k, tt)
        issue_until(Dh)
        for j in range(8):
            a(f"v_dot2c_f32_bf16_dpp v{ACC+j}, v{MISC+4}, v{tt+j} row_newbcast:{p} row_mask:0xf bank_mask:0xf")
    reduce8(ACC)
    a(f"v_fmac_f32 v{MISC+2}, v{ACC}, v{MISC+1}")
    a(f"v_fmac_f32 v{MISC+3}, v{ACC+1}, v{MISC+1}")
    for p in range(16):
        k = 80 + 2 * p
        perm_pair(k, WO + 8 * p)
        issue_until(Dh)
    for j in range(8): a(f"v_mov_b32 v{ACC+j}, 0")
    a("v_lshlrev_b32 v4, 3, v0")
    a("v_mov_b32 v5, 0")
    a("s_lshl_b32 s49, s33, 11")
    a("s_lshl_b32 s35, s3, 9")
    a("s_add_u32 s49, s49, s35")
    if stamp: a("s_memrealtime s[92:93]")
    a("s_barrier")
    if stamp: a("s_memrealtime s[94:95]")
    tm, tl, to = TP, TP + 4, TP + 8
    a(f"ds_read_b128 {vr(tm)}, v5 offset:{L_ML}")
    a(f"ds_read_b128 {vr(tl)}, v5 offset:{L_ML+32}")
    for w in range(NS): a(f"ds_read_b64 {vr(to+2*w,2)}, v4 offset:{L_OPART + w*512}")
    a("s_waitcnt lgkmcnt(5)")
    MX = RING
    a(f"v_max3_f32 v{MX}, v{tm}, v{tm+1}, v{tm+2}")
    a(f"v_max_f32 v{MX}, v{MX}, v{tm+3}")
    a(f"v_mul_f32 v{MX}, s48, v{MX}")
    for w in range(NS): a(f"v_fma_f32 v{tm+w}, v{tm+w}, s48, -v{MX}")
    for w in range(NS): a(f"v_exp_f32 v{tm+w}, v{tm+w}")
    a("s_waitcnt lgkmcnt(0)")
    a(f"v_mul_f32 v{MX+1}, v{tm}, v{tl}")
    a(f"v_mul_f32 v{MX+2}, v{tm}, v{to}")
    a(f"v_mul_f32 v{MX+3}, v{tm}, v{to+1}")
    for w in range(1, NS):
        a(f"v_fmac_f32 v{MX+1}, v{tm+w}, v{tl+w}")
        a(f"v_fmac_f32 v{MX+2}, v{tm+w}, v{to+2*w}")
        a(f"v_fmac_f32 v{MX+3}, v{tm+w}, v{to+2*w+1}")
    a(f"v_rcp_f32 v{MX+1}, v{MX+1}")
    a(f"v_mul_f32 v{MX+2}, v{MX+2}, v{MX+1}")
    a(f"v_mul_f32 v{MX+3}, v{MX+3}, v{MX+1}")
    a(f"v_cvt_pk_bf16_f32 v{MISC+4}, v{MX+2}, v{MX+3}")
    for p in range(16):
        for j in range(8):
            a(f"v_dot2c_f32_bf16_dpp v{ACC+j}, v{MISC+4}, v{WO+8*p+j} row_newbcast:{p} row_mask:0xf bank_mask:0xf")
    reduce8(ACC)
    a(f"v_fmac_f32 v{MISC+2}, v{ACC}, v{MISC}")
    a(f"v_fmac_f32 v{MISC+3}, v{ACC+1}, v{MISC}")
    a(f"buffer_store_dwordx2 {vr(MISC+2,2)}, v4, s[76:79], s49 offen sc1")
    if stamp: a("s_memrealtime s[96:97]")
    a("s_waitcnt vmcnt(0)")
    if final == "wg":
        a("s_barrier")
        a("s_cmp_lg_u32 s3, 0")
        a("s_cbranch_scc1 L_watom")
        a("s_lshl_b32 s35, s32, 5")
        a("v_mov_b32 v6, 1")
        a("s_mov_b64 exec, 1")
        a("buffer_atomic_add v6, v5, s[84:87], s35 offen sc0 sc1")
        a("s_waitcnt vmcnt(0)")
        a(f"ds_write_b32 v5, v6 offset:{L_FLAG}")
        a("s_waitcnt lgkmcnt(0)")
        a("s_mov_b64 exec, -1")
        a.label("L_watom")
        a("s_barrier")
        a(f"ds_read_b32 v6, v5 offset:{L_FLAG}")
        a("s_waitcnt lgkmcnt(0)")
        a("v_readfirstlane_b32 s35, v6")
        a("s_cmp_lg_u32 s35, 31")
    else:
        a("s_lshl_b32 s35, s32, 5")
        a("s_lshl_b32 s50, s3, 3")
        a("s_add_u32 s35, s35, s50")
        a("v_mov_b32 v6, 1")
        a("s_mov_b64 exec, 1")
        a("buffer_atomic_add v6, v5, s[84:87], s35 offen sc0 sc1")
        a("s_waitcnt vmcnt(0)")
        a("s_mov_b64 exec, -1")
        a("v_readfirstlane_b32 s35, v6")
        a("s_cmp_lg_u32 s35, 31")
    if stamp: a("s_memrealtime s[98:99]")
    a("s_cbranch_scc1 L_hend")
    a("v_and_b32 v6, 31, v0")
    a("v_lshlrev_b32 v6, 4, v6")
    a("v_lshrrev_b32 v7, 5, v0")
    a("v_lshl_add_u32 v6, v7, 11, v6")
    a("s_lshl_b32 s35, s3, 9")
    for k in range(16):
        a(f"buffer_load_dwordx4 {vr(WO+4*k)}, v6, s[76:79], s35 offen sc1")
        a("s_add_u32 s35, s35, 4096")
    a("v_and_b32 v6, 31, v0")
    a("v_lshrrev_b32 v7, 3, v6")
    a("v_and_b32 v6, 7, v6")
    a("v_lshlrev_b32 v6, 5, v6")
    a("v_lshl_add_u32 v6, v7, 2, v6")
    a("s_lshl_b32 s35, s3, 8")
    for k in range(1, 16):
        a(f"s_waitcnt vmcnt({15-k})")
        a(f"v_pk_add_f32 {vr(WO,2)}, {vr(WO,2)}, {vr(WO+4*k,2)}")
        a(f"v_pk_add_f32 {vr(WO+2,2)}, {vr(WO+2,2)}, {vr(WO+4*k+2,2)}")
    a(f"v_permlane32_swap_b32 v{WO}, v{WO+2}")
    a(f"v_permlane32_swap_b32 v{WO+1}, v{WO+3}")
    a(f"v_pk_add_f32 {vr(WO,2)}, {vr(WO,2)}, {vr(WO+2,2)}")
    a("v_lshrrev_b32 v7, 5, v0")
    a("v_lshl_add_u32 v6, v7, 4, v6")
    a(f"v_cvt_pk_bf16_f32 v{WO}, v{WO}, v{WO+1}")
    a(f"buffer_store_dword v{WO}, v6, s[80:83], s35 offen")
    a.label("L_hend")
    if stamp:
        a("s_waitcnt vmcnt(0)")
        a("s_memrealtime s[100:101]")
        stamp_out(a, NS + NH, add=0, helper=True)
    a.label("L_done")
    a("s_endpgm")
    a.pad()
    hdr = HEADER.replace("@@LAUNCH@@", f"; @launch grid=(256,1,1) block=({(NS+NH)*64},1,1) lds={LDS_BYTES}")
    body = a.text()
    tail = f""".section .rodata,"a"
.p2align 6
.amdhsa_kernel {KN}
  .amdhsa_next_free_vgpr 256
  .amdhsa_next_free_sgpr 102
  .amdhsa_accum_offset 256
  .amdhsa_group_segment_fixed_size 0
  .amdhsa_kernarg_size 112
  .amdhsa_user_sgpr_count 2
  .amdhsa_user_sgpr_kernarg_segment_ptr 1
  .amdhsa_system_sgpr_workgroup_id_x 1
.end_amdhsa_kernel
"""
    return hdr + body + tail

def stamp_out(a, NW, add=0, helper=False):
    a("s_mov_b64 exec, 1")
    a("s_getreg_b32 s35, hwreg(HW_REG_XCC_ID)")
    a("s_waitcnt lgkmcnt(0)")
    regs = [88, 90, 92] + ([94, 96, 98, 100] if helper else [92, 92, 92, 92])
    for i, r in enumerate(regs): a(f"v_mov_b32 v{8+i}, s{r}")
    a("v_mov_b32 v15, s35")
    a(f"s_mul_i32 s35, s2, {NW}")
    a("s_add_u32 s35, s35, s3")
    if add: a(f"s_add_u32 s35, s35, {add}")
    a("s_lshl_b32 s35, s35, 5")
    a("s_add_u32 s35, s35, 0x100000")
    a("v_mov_b32 v3, s35")
    a("global_store_dwordx4 v3, v[8:11], s[30:31]")
    a("global_store_dwordx4 v3, v[12:15], s[30:31] offset:16")
    a("s_waitcnt vmcnt(0)")

if __name__ == "__main__":
    import json
    out = sys.argv[1]
    kw = {}
    for s in sys.argv[2:]:
        k, v = s.split("=")
        try: v = int(v)
        except ValueError: v = v.replace("+", " ")
        kw[k] = v
    open(out, "w").write(gen(**kw))
```

```python
import sys, os, struct
sys.path.insert(0, os.path.dirname(os.path.abspath(__file__)))
from asmlib import Asm
KN = "gated_mix__mha_block_cached__moe_arch_mod__decode_kernel"
HEADER = open(os.path.join(os.path.dirname(os.path.abspath(__file__)), "header.txt")).read()


DOC = """; ---------------------------------------------------------------------------------------------
; Fused decode step: out = g*attn(x) + (1-g)*(x + sigmoid(x.w_r)*SwiGLU(x)),  B=8 H=32 Sk=4096 Dh=128
;   4 helper waves : q = x.Wq[:,h], Wo[h] slice -> registers, gates, 64-column slice of the SwiGLU FFN,
; ---------------------------------------------------------------------------------------------
"""

def f2u(x): return struct.unpack("<I", struct.pack("<f", x))[0]
LOG2E = 1.4426950408889634
CSCALE = LOG2E * (128 ** -0.5)

L_QPART = 0
L_FPART = 2048
L_OPART = 4096
L_ML    = 6144
L_CNT   = 6208
L_FLAG  = 6212
L_SC = 6400
L_KV = 6400 + 16384
LDS_BYTES = 6272

class VM:
    def __init__(self, a): self.a = a; self.q = []; self.seen = set()
    def issue(self, tag): self.q.append(tag); self.seen.add(tag)
    def wait(self, tag):
        assert tag in self.seen, tag
        if tag not in self.q: return
        idx = max(i for i, t in enumerate(self.q) if t == tag)
        n = len(self.q) - 1 - idx
        assert n <= 63
        self.a(f"s_waitcnt vmcnt({n})")
        self.q = self.q[idx+1:]
    def pace(self, n):
        if len(self.q) > n - 1:
            self.a(f"s_waitcnt vmcnt({n-1})")
            self.q = self.q[len(self.q) - (n - 1):] if n > 1 else []
    def waitall(self):
        self.a("s_waitcnt vmcnt(0)"); self.q = []

def vr(b, n=4): return f"v[{b}:{b+n-1}]"
DPPM = "row_mask:0xf bank_mask:0xf"
def pat(s):
    s = str(s)
    return [int(x) for x in s.split("_")] if "_" in s else [int(c) for c in s]

def gen(PRO=5, winp="56", sched="-1:5:5", fin=0, winf=8, lagf=2, Dq=8, Dh=2, wflags="nt", kvflags="nt",
        stamp=0, ending="e0", abl="", tlead=1, mapmode=0, qflags=None, roll=1, PL=0, boost="", il=1, order="KKKKVVVV", pure=0, pureU=8, sfirst=0, sprio=0, pure4="", p4win="5", p4wo=None, ctl="", cflags="sc1", cearly=0, dry=1, oflags="", win0=0, U=1, b2a=2, ra=0, rb=0, rsh=15, rcols="", pm=0, sp=0, nset=2, pgap=0, nV=6, wfin="", pf=0, pfl="", pfw=7, ep1=1, stf="sc1", gaf="sc1", R=4, touch=0, dbl=0):
    if qflags is None: qflags = wflags
    NS, NH, NG = 4, 4, 64
    a = Asm()
    a("s_cmp_ge_u32 s2, 256")
    a("s_cbranch_scc1 L_done")
    a("s_load_dwordx16 s[4:19], s[0:1], 0")
    a("s_load_dwordx8 s[20:27], s[0:1], 64")
    a("s_load_dwordx4 s[28:31], s[0:1], 96")
    if (stamp and stamp != 7) or dbl: a("s_memrealtime s[88:89]")
    a("v_lshrrev_b32 v1, 6, v0")
    a("v_and_b32 v0, 63, v0")
    a("v_readfirstlane_b32 s3, v1")
    if mapmode == 0:
        a("s_and_b32 s33, s2, 7")
        a("s_lshl_b32 s33, s33, 2")
        a("s_lshr_b32 s32, s2, 3")
        a("s_and_b32 s34, s32, 3")
        a("s_add_u32 s33, s33, s34")
        a("s_lshr_b32 s32, s32, 2")
    elif mapmode == 1:
        a("s_and_b32 s33, s2, 6")
        a("s_lshl_b32 s33, s33, 2")
        a("s_bfe_u32 s34, s2, 0x30003")
        a("s_add_u32 s33, s33, s34")
        a("s_and_b32 s32, s2, 1")
        a("s_lshl_b32 s32, s32, 2")
        a("s_lshr_b32 s34, s2, 6")
        a("s_add_u32 s32, s32, s34")
    elif mapmode == 2:
        a("s_and_b32 s33, s2, 3")
        a("s_lshl_b32 s33, s33, 3")
        a("s_bfe_u32 s34, s2, 0x30003")
        a("s_add_u32 s33, s33, s34")
        a("s_and_b32 s32, s2, 4")
        a("s_lshr_b32 s34, s2, 6")
        a("s_add_u32 s32, s32, s34")
    a("s_mov_b32 s46, 0x05040100")
    a("s_mov_b32 s47, 0x07060302")
    a(f"s_mov_b32 s48, {f2u(CSCALE):#x}")
    if sfirst: a("s_xor_b32 s3, s3, 4")
    a(f"s_cmp_lt_u32 s3, {NH}")
    a("s_cbranch_scc0 L_stream")

    def reduce8(b):
        for j in range(4): a(f"v_permlane32_swap_b32 v{b+j}, v{b+j+4}")
        for j in range(0, 4, 2): a(f"v_pk_add_f32 {vr(b+j,2)}, {vr(b+j,2)}, {vr(b+j+4,2)}")
        for j in range(2): a(f"v_permlane16_swap_b32 v{b+j}, v{b+j+2}")
        a(f"v_pk_add_f32 {vr(b,2)}, {vr(b,2)}, {vr(b+2,2)}")

    vm = vmh = VM(a)
    a("v_and_b32 v2, 15, v0")
    a("v_lshrrev_b32 v3, 4, v0")
    RG_ROWS, HW_ROWS, P_ROWS = (32, 128, 2) if sp else (2, 8, 32)
    a(f"v_lshlrev_b32 v5, {13 + RG_ROWS.bit_length() - 1}, v3")
    a("v_lshl_add_u32 v5, v2, 4, v5")
    a("v_add_u32 v6, 0x2000, v5")
    a(f"s_lshl_b32 s44, s3, {13 + HW_ROWS.bit_length() - 1}")
    a("s_lshl_b32 s35, s33, 8")
    a("s_add_u32 s44, s44, s35")
    a(f"v_lshlrev_b32 v4, {P_ROWS.bit_length()}, v2")
    a(f"v_lshl_add_u32 v4, v3, {RG_ROWS.bit_length()}, v4")
    a(f"s_lshl_b32 s45, s3, {HW_ROWS.bit_length()}")
    a("s_lshl_b32 s35, s32, 10")
    a("s_mov_b32 s38, 1024"); a("s_mov_b32 s39, 0x20000")
    a("s_mov_b32 s42, 0x400000"); a("s_mov_b32 s43, 0x20000")
    if "q" in abl: a("s_mov_b32 s42, 0")
    a("s_waitcnt lgkmcnt(0)")
    a("s_add_u32 s36, s4, s35"); a("s_addc_u32 s37, s5, 0")
    a("s_mov_b32 s40, s10"); a("s_mov_b32 s41, s11")
    ACC = 8
    XP = 16
    GA = 18
    G_, GR_, YB, HP, CNTA, XR = 20, 21, 22, 24, 25, 26
    TP = 40
    RING = 56
    WO = 120
    GOFF = 24 + 8
    NR = 16
    stream = []
    st = {"issued": 0, "consumed": 0, "limit": 0}
    def bload(srd, voff, soff, imm, post=None):
        def f(dst):
            a(f"buffer_load_dwordx4 {vr(dst)}, {voff}, {srd}, {soff} offen offset:{imm} {qflags if srd == 's[40:43]' else wflags}")
            if post: a(post)
        return f
    for p in range(16):
        stream.append(bload("s[40:43]", "v5", "s44", 0))
        stream.append(bload("s[40:43]", "v6", "s44", 0, f"s_add_u32 s44, s44, {P_ROWS*8192}"))
    def gload(imm, adv):
        def f(dst):
            a(f"global_load_dwordx4 {vr(dst)}, {vr(GA,2)}, off offset:{imm} {wflags}")
            if adv:
                a(f"v_add_co_u32 v{GA}, vcc, {P_ROWS*3584}, v{GA}")
                a(f"v_addc_co_u32 v{GA+1}, vcc, 0, v{GA+1}, vcc")
        return f
    for p in range(16):
        stream.append(bload("s[64:67]", "v7", "s51", 0))
        stream.append(bload("s[64:67]", "v7", "s51", 1024, "s_add_u32 s51, s51, 8192"))
    for p in range(16):
        stream.append(gload(0, False)); stream.append(gload(3584, p < 15))
    for p in range(8):
        stream.append(bload("s[60:63]", "v7", "s50", 0))
        stream.append(bload("s[60:63]", "v7", "s50", 1024, "s_add_u32 s50, s50, 8192"))
    def issue_one():
        k = st["issued"]
        stream[k](RING + (k % NR) * 4)
        vmh.issue(("W", k))
        st["issued"] += 1
    def issue_until(depth):
        while st["issued"] < st["limit"] and st["issued"] - st["consumed"] < depth:
            issue_one()
    def depth_for(k):
        d = pat(Dq) if k < 32 else pat(Dh)
        return d[k % len(d)]
    def advance(kneed):
        while ("W", kneed) not in vmh.seen or ("W", kneed) in vmh.q:
            k = st["issued"]
            if k < st["limit"] and k - st["consumed"] < NR:
                vmh.pace(depth_for(k))
                issue_one()
            else:
                vmh.wait(("W", kneed))
    st["limit"] = 64
    a(f"buffer_load_dword v{XP}, v4, s[36:39], s45 offen")
    vm.issue("XQ")
    issue_until(max(pat(Dq)) if roll else int(Dq))
    a("s_branch L_helper")

    a.label("L_stream")
    vm = VM(a)
    assert ending == "e3"
    a(f"s_sub_u32 s3, s3, {NH}")
    if pm:
        a("s_and_b32 s35, s3, 1"); a("s_lshl_b32 s35, s35, 13")
        a("s_lshr_b32 s34, s3, 1"); a("s_lshl_b32 s34, s34, 10"); a("s_add_u32 s35, s35, s34")
    else:
        a(f"s_lshl_b32 s35, s3, {10 + (U.bit_length() - 1)}")
    a("v_lshlrev_b32 v1, 4, v0")
    a("v_add_u32 v1, s35, v1")
    a("s_lshl_b32 s34, s32, 5")
    a("s_add_u32 s34, s34, s33")
    a("s_lshl_b32 s35, s34, 20")
    a("s_mov_b32 s38, 0x100000")
    a("s_mov_b32 s39, 0x20000")
    a("s_mov_b32 s42, 0x100000")
    a("s_mov_b32 s43, 0x20000")
    rot = ra or rb or rcols
    if rcols:
        a("s_mov_b32 s44, 0")
        for p, ch in enumerate(rcols.lstrip("c")):
            if int(ch):
                a(f"s_bitcmp1_b32 s34, {p}")
                a(f"s_cselect_b32 s45, {int(ch) << 17}, 0")
                a("s_xor_b32 s44, s44, s45")
    elif rot:
        a("s_and_b32 s44, s2, 7"); a(f"s_mul_i32 s44, s44, {ra}")
        a("s_lshr_b32 s45, s2, 3"); a(f"s_mul_i32 s45, s45, {rb}")
        a("s_add_u32 s44, s44, s45"); a(f"s_lshl_b32 s44, s44, {rsh}"); a("s_and_b32 s44, s44, 0xfffff")
    else:
        a("s_mov_b32 s44, 0")
    if pf:
        a("s_and_b32 s62, s2, 7")
        a("s_lshr_b32 s63, s2, 3")
        a("s_lshl_b32 s63, s63, 2")
        a("s_add_u32 s63, s63, s3")
        a("v_lshlrev_b32 v2, 4, v0")
        a("s_mov_b32 s66, 0x400000"); a("s_mov_b32 s67, 0x20000")
        a("s_mov_b32 s70, 0x400000"); a("s_mov_b32 s71, 0x20000")
        a("s_lshl_b32 s45, s63, 15"); a("s_lshl_b32 s57, s62, 10"); a("s_add_u32 s45, s45, s57")
        a("s_lshl_b32 s84, s62, 19"); a("s_lshl_b32 s57, s63, 12"); a("s_add_u32 s84, s84, s57")
    a("s_waitcnt lgkmcnt(0)")
    if not pf:
        a("s_add_u32 s36, s6, s35")
        a("s_addc_u32 s37, s7, 0")
    BUF = 48
    Q, O, A, UE, WE, SC, M, Lr, T = 4, 8, 16, 24, 26, 28, 30, 31, 32
    PK, AL = 16, 28
    def reg(slot, j): return BUF + slot * 32 + j * 4
    cur = {"wins": pat(winp), "n": 0}
    def setwin(p): cur["wins"] = p; cur["n"] = 0
    def nextwin():
        wins = cur["wins"]; n = wins[cur["n"] % len(wins)]; cur["n"] += 1; return n
    def imm(j): return (j % 2) * 2048 if pm else (j % U) * 1024
    def post(j):
        if pm:
            if j % 2 == 1: a(f"s_add_u32 s44, s44, {4096 if j % 4 == 1 else 12288}")
        elif j % U == U - 1: a(f"s_add_u32 s44, s44, {NS*U*1024}")
        if rot and (j == 7 or rsh < 15): a("s_and_b32 s44, s44, 0xfffff")
    def issue1(slot, j, ten):
        vm.pace(nextwin())
        a(f"buffer_load_dwordx4 {vr(reg(slot,j))}, v1, {'s[36:39]' if ten == 'K' else 's[40:43]'}, s44 offen offset:{imm(j)} {kvflags}")
        vm.issue((slot, j)); post(j)
    def issueL(g, j):
        a(f"s_add_u32 m0, s54, {g*8192 + j*1024 - imm(j)}")
        vm.pace(nextwin())
        a(f"buffer_load_dwordx4 v1, s[36:39], s44 offen offset:{imm(j)} {kvflags} lds")
        vm.issue(("L", g)); post(j)
    def lane_of(i): return ((i & 1) << 3) | (((i >> 1) & 1) << 2) | ((i >> 2) & 1) | (((i >> 3) & 1) << 1)
    def procK(slot, gq, staged=False):
        L = []
        for hf in range(2):
            js = range(4 * hf, 4 * hf + 4)
            if staged:
                if hf == 0: L.append("s_waitcnt lgkmcnt(0)")
            else: L.append(("wait", (slot, 4 * hf + 3)))
            for j in js: L.append(f"v_dot2_f32_bf16 v{A+j}, v{reg(slot,j)}, v{Q}, 0")
            for c in range(1, 4):
                for j in js: L.append(f"v_dot2c_f32_bf16 v{A+j}, v{reg(slot,j)+c}, v{Q+c}")
            b = A + 4 * hf
            for e in range(2): L.append(f"v_add_f32_dpp v{b+e}, v{b+e}, v{b+e} row_ror:8 row_mask:0xf bank_mask:0x3")
            for e in range(2): L.append(f"v_add_f32_dpp v{b+e}, v{b+2+e}, v{b+2+e} row_ror:8 row_mask:0xf bank_mask:0xc")
        D = UE if gq % 2 == 0 else A + 2
        for e in range(2): L.append(f"v_add_f32_dpp v{D+e}, v{A+e}, v{A+e} row_half_mirror row_mask:0xf bank_mask:0x5")
        for e in range(2): L.append(f"v_add_f32_dpp v{D+e}, v{A+4+e}, v{A+4+e} row_half_mirror row_mask:0xf bank_mask:0xa")
        def lvl(d1, d2, mask, qp, R):
            for e in range(2):
                L.append(f"v_cndmask_b32 v{T+2*e}, v{d1+e}, v{d2+e}, {mask}")
                L.append(f"v_cndmask_b32 v{T+2*e+1}, v{d2+e}, v{d1+e}, {mask}")
            for e in range(2): L.append(f"v_add_f32_dpp v{R+e}, v{T+2*e+1}, v{T+2*e} {qp} {DPPM}")
        if gq % 2 == 1:
            lvl(UE, A + 2, "s[58:59]", "quad_perm:[1,0,3,2]", WE if gq == 1 else A + 6)
        if gq == 3:
            lvl(WE, A + 6, "s[60:61]", "quad_perm:[2,3,0,1]", SC)
            L.append(f"ds_write_b64 v2, {vr(SC,2)}")
            L.append(f"v_max3_f32 v{M}, v{SC}, v{SC+1}, v{M}")
            L.append("v_add_u32 v2, 0x200, v2")
        return L
    def procV(slot, gq):
        L = []
        for t in range(4):
            tt = T + (t % 2) * 8
            L.append(("wait", (slot, 2 * t + 1)))
            for c in range(4):
                L.append(f"v_perm_b32 v{tt+2*c}, v{reg(slot,2*t+1)+c}, v{reg(slot,2*t)+c}, s46")
                L.append(f"v_perm_b32 v{tt+2*c+1}, v{reg(slot,2*t+1)+c}, v{reg(slot,2*t)+c}, s47")
            for j in range(8): L.append(f"v_dot2c_f32_bf16_dpp v{O+j}, v{PK}, v{tt+j} row_newbcast:{lane_of(4*gq+t)} {DPPM}")
        if gq == 3:
            for u in range(7): L.append(f"v_mov_b32 v{PK+u}, v{PK+u+1}")
        return L
    def wave_reduce(r, tmp, op):
        L = []
        for dpp in ("quad_perm:[1,0,3,2]", "quad_perm:[2,3,0,1]", "row_half_mirror", "row_mirror"):
            L.append(f"{op}_dpp v{r}, v{r}, v{r} {dpp} {DPPM}")
        for sw in ("v_permlane32_swap_b32", "v_permlane16_swap_b32"):
            L += [f"v_mov_b32 v{tmp}, v{r}", f"{sw} v{r}, v{tmp}", f"{op} v{r}, v{r}, v{tmp}"]
        return L
    def boundary():
        L = ["v_subrev_u32 v2, 0x1000, v2"]
        for u in range(8): L.append(f"ds_read_b64 {vr(T+2*u,2)}, v2 offset:{u*512}")
        L += wave_reduce(M, SC, "v_max_f32")
        L.append(f"v_mul_f32 v{SC}, s48, v{M}")
        L.append(f"v_mov_b32 v{Lr}, 0")
        L.append("s_waitcnt lgkmcnt(0)")
        for u in range(16): L.append(f"v_fma_f32 v{T+u}, v{T+u}, s48, -v{SC}")
        for u in range(16): L.append(f"v_exp_f32 v{T+u}, v{T+u}")
        for u in range(8): L.append(f"v_cvt_pk_bf16_f32 v{PK+u}, v{T+2*u}, v{T+2*u+1}")
        for u in range(8): L.append(f"v_dot2c_f32_bf16 v{Lr}, 0x3f803f80, v{PK+u}")
        L += wave_reduce(Lr, SC, "v_add_f32")
        L += ["s_lshl_b32 s35, s3, 2", "v_mov_b32 v3, s35", "v_mov_b32 v2, 0", "s_mov_b64 exec, 1",
              f"ds_write_b32 v3, v{M} offset:{L_ML}", f"ds_write_b32 v3, v{Lr} offset:{L_ML+16}", "s_mov_b64 exec, -1"]
        return L
    def emit(L):
        for x in L:
            if isinstance(x, tuple): vm.wait(x[1])
            elif x.endswith(":"): a.label(x[:-1])
            else: a(x)
    def rnd(islot, ten, L, extra0=()):
        L = list(L)
        for j in range(8):
            issue1(islot, j, ten)
            if j == 0: emit(extra0)
            budget = -(-len(L) // (8 - j))
            masked = False
            while L and (j == 7 or budget > 0 or masked):
                x = L[0]
                if isinstance(x, tuple) and j < 7 and x[1] in vm.q: break
                if x == "s_mov_b64 exec, 1": masked = True
                if x == "s_mov_b64 exec, -1": masked = False
                emit([L.pop(0)]); budget -= 1
    if pf:
        assert mapmode == 0
        a("s_mov_b32 s64, s10"); a("s_mov_b32 s65, s11")
        pr = [BUF + 4 * 32 + 4 * i for i in range(14)]
        n_ = [0]
        def pl(voff, srd, soff, im):
            vm.pace(pfw)
            a(f"buffer_load_dwordx4 {vr(pr[n_[0]])}, {voff}, {srd}, {soff} offen offset:{im} {pfl}")
            vm.issue(("P", n_[0])); n_[0] += 1
        for i in range(4):
            pl("v2", "s[64:67]", "s45", 0)
            if i < 3: a("s_add_u32 s45, s45, 8192")
        if pf >= 2:
            a("s_mov_b32 s68, s12"); a("s_mov_b32 s69, s13")
            pl("v2", "s[68:71]", "s84", 0)
            a("s_add_u32 s36, s6, s35")
            a("s_addc_u32 s37, s7, 0")
            if touch:
                a("s_add_u32 s40, s8, s35"); a("s_addc_u32 s41, s9, 0")
                a("s_mov_b64 exec, 1")
                a("s_cmp_lg_u32 s3, 0"); a("s_cbranch_scc1 L_t1")
                a("buffer_load_dword v240, v1, s[36:39], s44 offen nt")
                a.label("L_t1")
                if touch >= 2:
                    a("s_cmp_lg_u32 s3, 1"); a("s_cbranch_scc1 L_t2")
                    a("buffer_load_dword v240, v1, s[40:43], s44 offen nt")
                    a.label("L_t2")
                a("s_mov_b64 exec, -1")
            a("s_cmp_lt_u32 s62, 7")
            a("s_cselect_b32 s74, 0x1c0000, 0"); a("s_mov_b32 s75, 0x20000"); a("s_mov_b32 s72, s18"); a("s_mov_b32 s73, s19")
            a("s_mov_b32 s78, s74"); a("s_mov_b32 s79, 0x20000"); a("s_mov_b32 s76, s20"); a("s_mov_b32 s77, s21")
            a("s_mov_b32 s82, 0x1c0000"); a("s_mov_b32 s83, 0x20000"); a("s_mov_b32 s80, s22"); a("s_mov_b32 s81, s23")
            a("v_lshrrev_b32 v3, 5, v0"); a("v_mul_u32_u24 v3, 3584, v3"); a("v_and_b32 v4, 31, v0"); a("v_lshl_add_u32 v3, v4, 4, v3")
            a(f"s_mul_i32 s45, s63, {4*3584}"); a("s_lshl_b32 s57, s62, 9"); a("s_add_u32 s45, s45, s57")
            a("s_add_u32 s57, s45, 7168")
            for i in range(1, 4): pl("v2", "s[68:71]", "s84", i * 1024)
            for srd in ("s[72:75]", "s[76:79]"):
                pl("v3", srd, "s45", 0); pl("v3", srd, "s57", 0)
            a("s_lshl_b32 s45, s62, 18"); a("s_lshl_b32 s57, s63, 11"); a("s_add_u32 s45, s45, s57")
            for i in range(2): pl("v2", "s[80:83]", "s45", i * 1024)
    NSLOT = PRO + 1
    pA, pB, nb0, nbx, nbq, nbf, nbn, nbc = str(boost).split(",")
    pA, pB = pat(pA), pat(pB)
    init = [f"v_mov_b32 v{M}, 0xff800000"] + [f"v_mov_b32 v{O+j}, 0" for j in range(8)]
    init += ["s_add_u32 s40, s8, s35", "s_addc_u32 s41, s9, 0", f"s_mul_i32 s54, s3, {PL*8192}", f"s_add_u32 s54, s54, {L_KV}",
             "v_and_b32 v2, 15, v0", "v_lshlrev_b32 v2, 5, v2", "s_getreg_b32 s49, hwreg(HW_REG_XCC_ID)", "s_and_b32 s49, s49, 1",
             "s_lshl_b32 s35, s32, 5", "s_add_u32 s52, s28, s35", "s_addc_u32 s53, s29, 0",
             "s_mov_b32 s58, 0xaaaaaaaa", "s_mov_b32 s59, 0xaaaaaaaa", "s_mov_b32 s60, 0xcccccccc", "s_mov_b32 s61, 0xcccccccc",
             "v_lshlrev_b32 v3, 4, v0", "v_add_u32 v3, s54, v3"]
    init += [f"s_mov_b32 s55, {nb0}",
             "s_cmp_eq_u32 s49, 0", f"s_cselect_b32 s57, {nbx}, 0", "s_add_u32 s55, s55, s57",
             "s_lshr_b32 s57, s10, 8", "s_add_u32 s57, s57, s33", "s_and_b32 s57, s57, 3", "s_cmp_eq_u32 s57, 1",
             f"s_cselect_b32 s57, {nbq}, 0", "s_add_u32 s55, s55, s57",
             "s_lshr_b32 s57, s18, 7", "s_add_u32 s57, s57, s33", "s_and_b32 s57, s57, 3", "s_cmp_eq_u32 s57, 3",
             f"s_cselect_b32 s57, {nbf}, 0", "s_cmp_lt_u32 s33, 28", f"s_cselect_b32 s57, s57, {-int(nbn)}", "s_add_i32 s55, s55, s57",
             "s_getreg_b32 s57, hwreg(HW_REG_HW_ID, 8, 4)", f"s_mul_i32 s57, s57, {nbc}", "s_lshr_b32 s57, s57, 3", "s_add_i32 s55, s55, s57",
             "s_max_i32 s55, s55, 0", "s_lshr_b32 s56, s2, 3", "s_and_b32 s56, s56, 7"]
    for g in range(PRO):
        for j in range(8):
            issue1(g, j, "K")
            if g == 0 and j == 4: emit(init)
    for g in range(PL):
        for j in range(8): issueL(g, j)
    a("s_barrier")
    TQ = [32, 40, 240, 248]
    qrd = []
    for hw in range(4):
        a(f"ds_read_b128 {vr(TQ[hw])}, v2 offset:{L_QPART + hw*512}")
        a(f"ds_read_b128 {vr(TQ[hw]+4)}, v2 offset:{L_QPART + hw*512 + 16}")
    qrd.append("s_waitcnt lgkmcnt(0)")
    for j in range(0, 8, 2): qrd.append(f"v_pk_add_f32 {vr(32+j,2)}, {vr(32+j,2)}, {vr(40+j,2)}")
    for j in range(0, 8, 2): qrd.append(f"v_pk_add_f32 {vr(240+j,2)}, {vr(240+j,2)}, {vr(248+j,2)}")
    for j in range(0, 8, 2): qrd.append(f"v_pk_add_f32 {vr(32+j,2)}, {vr(32+j,2)}, {vr(240+j,2)}")
    for j in range(4): qrd.append(f"v_cvt_pk_bf16_f32 v{Q+j}, v{32+2*j}, v{33+2*j}")
    qrd += ["s_lshl_b32 s35, s3, 12", f"s_add_u32 s35, s35, {L_SC}", "v_lshl_add_u32 v2, v0, 3, s35"]
    loc = {g: g for g in range(PRO)}
    inlds = list(range(PRO, PRO + PL))
    stagedset = set()
    free = list(range(PRO, NSLOT))
    st_ = {"gi": PRO + PL, "gp": 0}
    def proc(g):
        sl = loc[g]
        if g < 32: L = procK(sl, g % 4, staged=(g in stagedset))
        else: L = (boundary() if g == 32 else []) + procV(sl, g % 4)
        free.append(sl)
        if inlds and len(free) >= 2:
            gl_ = inlds.pop(0); ls = free.pop()
            L.append(("wait", ("L", gl_ - PRO)))
            for j in range(8): L.append(f"ds_read_b128 {vr(reg(ls,j))}, v3 offset:{(gl_-PRO)*8192 + j*1024}")
            loc[gl_] = ls; stagedset.add(gl_)
        return L
    def uround(pre=(), extra0=(), lag=1):
        gi, gp = st_["gi"], st_["gp"]
        isl = free.pop(0); loc[gi] = isl
        if gi == 32 and not rot: a("s_mov_b32 s44, 0")
        n = max(min(2, gi - gp - (lag - 1)), 0)
        L = list(pre)
        for g in range(gp, gp + n): L += proc(g)
        rnd(isl, "K" if gi < 32 else "V", L, extra0)
        st_["gi"] += 1; st_["gp"] += n
    a("; ---- catch-up rounds (two K groups consumed per group issued)")
    uround(pre=qrd)
    while st_["gi"] - st_["gp"] > 1 or st_["gp"] % 4: uround()
    Wall = max(pat(winp) + pA + pB)
    nK = (28 - st_["gp"]) // 4
    NIT = nK + nV
    def loop(tag, n, ten):
        sa = loc[st_["gp"]]; sb = free[0]
        worst = [(sa, j) for j in range(8)][-Wall:]
        a(f"s_mov_b32 s45, {n}")
        a.label(f"L_top{tag}")
        a("s_add_u32 s56, s56, s55")
        a(f"s_cmp_ge_u32 s56, {NIT}")
        a(f"s_cbranch_scc1 L_B{tag}")
        for v, pp in (("A", pA), ("B", pB)):
            a.label(f"L_{v}{tag}")
            if v == "B": a(f"s_sub_u32 s56, s56, {NIT}")
            assert 32 % len(pp) == 0
            setwin(pp); vm.q = list(worst)
            x, y = sa, sb
            for gq in range(4):
                rnd(y, ten, procK(x, gq) if ten == "K" else procV(x, gq))
                x, y = y, x
            a("s_sub_u32 s45, s45, 1")
            a("s_cmp_lg_u32 s45, 0")
            a(f"s_cbranch_scc1 L_top{tag}")
            if v == "A": a(f"s_branch L_x{tag}")
        a.label(f"L_x{tag}")
        vm.q = list(worst)
        st_["gp"] += 4 * n; st_["gi"] += 4 * n
        loc[st_["gp"]] = sa
        setwin(pA)
    loop("K", nK, "K")
    while st_["gp"] < 36: uround()
    a("; ---- V loop")
    loop("V", nV, "V")
    tk = ["s_cmp_lg_u32 s3, 0", "s_cbranch_scc1 L_tk1",
          "s_mov_b32 s57, 0x1000000",
          "L_tk0:", "s_sub_u32 s57, s57, 1", "s_cbranch_scc1 L_tk3", f"ds_read_b32 v3, v2 offset:{L_CNT}", "s_waitcnt lgkmcnt(0)", "v_readfirstlane_b32 s50, v3",
          f"s_cmp_lt_u32 s50, {NH}", "s_cbranch_scc1 L_tk0", "L_tk3:",
          "s_mov_b32 s50, 1", "s_atomic_add s50, s[52:53], 0 glc", "L_tk1:"]
    setwin(pat(winf))
    wf = [int(x) for x in wfin.split("_")] if wfin else []
    while st_["gi"] < 64:
        left = 64 - st_["gi"]
        w_ = None
        if wf:
            w_ = wf[-left] if left <= len(wf) else None
            setwin([w_] if w_ else pA)
        uround(extra0=tk if st_["gi"] == 63 else (), lag=2 if (w_ and w_ > 8) else 1)
    while st_["gp"] < 63:
        emit(proc(st_["gp"])); st_["gp"] += 1
    Lp = procV(loc[63], 3)[:-7]
    emit(Lp[:17 * b2a])
    a("s_cmp_lg_u32 s3, 0")
    a("s_cbranch_scc1 L_tk2")
    a("s_waitcnt lgkmcnt(0)")
    a("v_mov_b32 v3, s50")
    a(f"ds_write_b32 v2, v3 offset:{L_ML+32}")
    a.label("L_tk2")
    a("s_waitcnt lgkmcnt(0)")
    a("s_barrier")
    a(f"ds_read_b128 {vr(240)}, v2 offset:{L_ML}")
    a(f"ds_read_b128 {vr(244)}, v2 offset:{L_ML+16}")
    a("s_lshl_b32 s35, s3, 9")
    a("v_lshl_add_u32 v3, v0, 3, s35")
    a("s_waitcnt lgkmcnt(1)")
    a("v_max3_f32 v248, v240, v241, v242")
    a("v_max_f32 v248, v248, v243")
    a("v_mul_f32 v248, s48, v248")
    for w in range(4): a(f"v_fma_f32 v{240+w}, v{240+w}, s48, -v248")
    a(f"v_fma_f32 v{AL}, v{M}, s48, -v248")
    for w in range(4): a(f"v_exp_f32 v{240+w}, v{240+w}")
    a(f"v_exp_f32 v{AL}, v{AL}")
    a("s_waitcnt lgkmcnt(0)")
    a(f"v_mul_f32 v{Lr}, v240, v244")
    for w in range(1, 4): a(f"v_fmac_f32 v{Lr}, v{240+w}, v{244+w}")
    a(f"v_rcp_f32 v{Lr}, v{Lr}")
    a(f"v_mul_f32 v{AL}, v{AL}, v{Lr}")
    emit(Lp[17 * b2a:])
    reduce8(O)
    a(f"v_pk_mul_f32 {vr(O,2)}, {vr(O,2)}, {vr(AL,2)} op_sel_hi:[1,0]")
    a(f"ds_write_b64 v3, {vr(O,2)} offset:{L_OPART}")
    a("s_waitcnt lgkmcnt(0)")
    a("s_barrier")
    a("s_endpgm")

    a.label("L_helper")
    vm = vmh
    if stamp == 3: a("s_memrealtime s[92:93]")
    a("s_mov_b32 s60, s22"); a("s_mov_b32 s61, s23"); a("s_mov_b32 s62, 0x1c0000"); a("s_mov_b32 s63, 0x20000")
    a("s_mov_b32 s64, s12"); a("s_mov_b32 s65, s13"); a("s_mov_b32 s66, 0x400000"); a("s_mov_b32 s67, 0x20000")
    if "o" in abl: a("s_mov_b32 s66, 0")
    a("s_mov_b32 s68, s16"); a("s_mov_b32 s69, s17"); a("s_mov_b32 s70, 1024"); a("s_mov_b32 s71, 0x20000")
    a("s_mov_b32 s72, s24"); a("s_mov_b32 s73, s25"); a("s_mov_b32 s74, 1024"); a("s_mov_b32 s75, 0x20000")
    a("s_mul_i32 s35, s32, 0x10100")
    a("s_add_u32 s76, s30, s35"); a("s_addc_u32 s77, s31, 0"); a("s_mov_b32 s78, 0x10100"); a("s_mov_b32 s79, 0x20000")
    a("s_lshl_b32 s35, s32, 10")
    a("s_add_u32 s80, s26, s35"); a("s_addc_u32 s81, s27, 0"); a("s_mov_b32 s82, 1024"); a("s_mov_b32 s83, 0x20000")
    a("s_mov_b32 s84, s28"); a("s_mov_b32 s85, s29"); a("s_mov_b32 s86, 256"); a("s_mov_b32 s87, 0x20000")
    a("s_lshl_b32 s35, s3, 8")
    a("s_lshl_b32 s50, s33, 16"); a("s_add_u32 s50, s50, s35")
    a("s_lshl_b32 s51, s33, 17"); a("s_add_u32 s51, s51, s35")
    a("v_lshlrev_b32 v7, 11, v3")
    a("v_lshl_add_u32 v7, v2, 4, v7")
    if cearly:
        a("s_lshl_b32 s49, s33, 11")
        a("s_lshl_b32 s35, s3, 9")
        a("s_add_u32 s49, s49, s35")
        for j in range(4): a(f"v_mov_b32 v{28+j}, -1")
        a("v_lshlrev_b32 v32, 4, v0")
        a("s_mov_b32 exec_hi, 0")
        a(f"buffer_store_dwordx4 v[28:31], v32, s[76:79], s49 offen {cflags}")
        vmh.issue("CLR")
        a("s_mov_b64 exec, -1")
    TAG = 27
    a("s_lshl_b32 s49, s33, 11")
    a("s_lshl_b32 s35, s3, 9")
    a("s_add_u32 s49, s49, s35")
    a("v_mov_b32 v28, 0x10000")
    a("v_lshlrev_b32 v29, 4, v0")
    if ep1:
        a("s_cmp_lg_u32 s3, 0")
        a("s_cbranch_scc1 L_noep")
        a("s_mov_b64 exec, 1")
        a(f"buffer_load_dword v{TAG}, v28, s[76:79], 0 offen sc1")
        a("s_mov_b64 exec, -1")
        a.label("L_noep")
    else:
        a(f"buffer_load_dword v{TAG}, v28, s[76:79], 0 offen sc1"); vm.issue("ST")
    a("s_mov_b32 exec_hi, 0")
    a(f"buffer_load_dwordx4 {vr(WO)}, v29, s[76:79], s49 offen sc1"); vm.issue("ST")
    a("s_mov_b64 exec, -1")
    for j in range(8): a(f"v_mov_b32 v{ACC+j}, 0")
    a(f"v_mov_b32 v{CNTA}, {L_CNT}")
    a(f"ds_write_b32 v{CNTA}, v{ACC}")
    if ctl:
        a("v_mov_b32 v28, 16"); a("v_mov_b32 v29, 16")
        a(f"ds_write_b64 v{ACC}, v[28:29] offset:{L_ML+32}")
    a("v_lshlrev_b32 v4, 5, v2")
    a("v_lshl_add_u32 v4, v3, 3, v4")
    a("s_lshl_b32 s35, s3, 9")
    a("v_add_u32 v1, s35, v4")

    def perm_pair(k, dst):
        r0 = RING + (k % NR) * 4; r1 = RING + ((k + 1) % NR) * 4
        if roll: advance(k + 1)
        else: vm.wait(("W", k + 1))
        for c in range(4):
            a(f"v_perm_b32 v{dst+2*c}, v{r1+c}, v{r0+c}, s46")
            a(f"v_perm_b32 v{dst+2*c+1}, v{r1+c}, v{r0+c}, s47")
        st["consumed"] = k + 2
    def dots(src, t, p):
        for j in range(8): a(f"v_dot2c_f32_bf16_dpp v{ACC+j}, v{src}, v{t+j} row_newbcast:{p} {DPPM}")
    a("; ---- q partials")
    for p in range(16):
        k = 2 * p
        t = TP + (p % 2) * 8
        perm_pair(k, t)
        if stamp == 3 and p == 0: a("s_memrealtime s[94:95]")
        if stamp == 3 and p == 8: a("s_memrealtime s[96:97]")
        if not roll: issue_until(int(Dq) if k + 2 + int(Dq) <= 32 else int(Dh))
        if p == 0: vm.wait("XQ")
        dots(XP, t, p)
    reduce8(ACC)
    a(f"ds_write_b64 v1, {vr(ACC,2)} offset:{L_QPART}")
    if ep1:
        vm.wait("ST")
        a("s_cmp_lg_u32 s3, 0")
        a("s_cbranch_scc1 L_noep2")
        a("s_mov_b64 exec, 1")
        a(f"ds_write_b32 v{CNTA}, v{TAG} offset:{L_FLAG - L_CNT}")
        a("s_mov_b64 exec, -1")
        a.label("L_noep2")
    if stamp == 3: a("s_memrealtime s[98:99]")
    a("s_waitcnt lgkmcnt(0)")
    if not pure: a("s_barrier")
    if (stamp and stamp != 7) or dbl: a("s_memrealtime s[90:91]")
    if ending in ("e2", "e3"):
        z = WO
        vm.wait("ST")
        if ep1:
            a(f"ds_read_b32 v{TAG}, v{CNTA} offset:{L_FLAG - L_CNT}")
            a("s_waitcnt lgkmcnt(0)")
        a(f"v_add_u32 v{TAG}, 1, v{TAG}")
        a(f"v_readfirstlane_b32 s53, v{TAG}")
        a(f"v_and_b32 v{TAG}, 0xff, v{TAG}")
        a(f"v_xor_b32 v28, v{z}, v{TAG}")
        for j in (1, 2, 3): a(f"v_bitop3_b32 v28, v28, v{z+j}, v{TAG} bitop3:0xf6")
        a("v_and_b32 v28, 0xff, v28")
        a("s_mov_b32 exec_hi, 0")
        a("v_cmp_eq_u32 vcc, 0, v28")
        a("s_cbranch_vccz L_nostale")
        for j in range(4): a(f"v_xor_b32 v{z+j}, 0xff, v{TAG}")
        a(f"buffer_store_dwordx4 {vr(z)}, v29, s[76:79], s49 offen sc1")
        a("s_waitcnt vmcnt(0)")
        a.label("L_nostale")
        a("s_mov_b64 exec, -1")
        a("s_mov_b32 s52, 0xffffff00")
    a("; ---- Wo slice -> registers (row pairs interleaved)")
    for p in range(16):
        perm_pair(32 + 2 * p, WO + 8 * p)
        if not roll: issue_until(int(Dh))
    GX, GW, GR = RING, RING + 4, RING + 8
    t = RING + 16
    a("v_lshlrev_b32 v5, 4, v0")
    a(f"buffer_load_dwordx4 {vr(GX)}, v5, s[36:39], 0 offen")
    a(f"buffer_load_dwordx4 {vr(GW)}, v5, s[72:75], 0 offen")
    a(f"buffer_load_dwordx4 {vr(GR)}, v5, s[68:71], 0 offen")
    a("v_lshrrev_b32 v6, 1, v4")
    a("s_lshl_b32 s35, s3, 8")
    a(f"buffer_load_dword v{XR}, v6, s[36:39], s35 offen")
    if ending == "e1":
        for j in range(4): a(f"v_mov_b32 v{t+j}, -1")
        a("s_mov_b32 exec_hi, 0")
        if "c" not in abl and not cearly: a(f"buffer_store_dwordx4 {vr(t)}, v5, s[76:79], s49 offen {cflags}")
        a("s_mov_b64 exec, -1")
    a("v_cmp_gt_u32 vcc, 8, v2")
    a("v_mov_b32 v28, s20"); a("v_mov_b32 v29, s18")
    a(f"v_cndmask_b32 v{GA}, v28, v29, vcc")
    a("v_mov_b32 v28, s21"); a("v_mov_b32 v29, s19")
    a(f"v_cndmask_b32 v{GA+1}, v28, v29, vcc")
    a(f"s_mul_i32 s35, s3, {HW_ROWS*3584}")
    a("s_lshl_b32 s45, s33, 7")
    a("s_add_u32 s35, s35, s45")
    a(f"v_mul_u32_u24 v28, {RG_ROWS*3584}, v3")
    a("v_and_b32 v29, 7, v2")
    a("v_lshl_add_u32 v28, v29, 4, v28")
    a("v_add_u32 v28, s35, v28")
    a(f"v_add_co_u32 v{GA}, vcc, v28, v{GA}")
    a(f"v_addc_co_u32 v{GA+1}, vcc, 0, v{GA+1}, vcc")
    for j in range(8): a(f"v_mov_b32 v{ACC+j}, 0")
    vm.waitall()
    a("; ---- gates g, r")
    for c in range(4):
        a(f"v_lshlrev_b32 v{t}, 16, v{GX+c}")
        a(f"v_and_b32 v{t+1}, 0xffff0000, v{GX+c}")
        a(f"v_lshlrev_b32 v{t+2}, 16, v{GW+c}")
        a(f"v_and_b32 v{t+3}, 0xffff0000, v{GW+c}")
        a(f"v_mul_f32 v{t}, v{t}, v{t+2}")
        a(f"v_mul_f32 v{t+1}, v{t+1}, v{t+3}")
        a(f"v_cvt_pk_bf16_f32 v{t+4+c}, v{t}, v{t+1}")
    ZG, ZR = t + 8, t + 9
    a(f"v_mov_b32 v{ZG}, 0"); a(f"v_mov_b32 v{ZR}, 0")
    for c in range(4):
        a(f"v_dot2c_f32_bf16 v{ZG}, 0x3f803f80, v{t+4+c}")
        a(f"v_dot2c_f32_bf16 v{ZR}, v{GX+c}, v{GR+c}")
    for dpp in ("quad_perm:[1,0,3,2]", "quad_perm:[2,3,0,1]", "row_half_mirror", "row_mirror"):
        for z in (ZG, ZR): a(f"v_add_f32_dpp v{z}, v{z}, v{z} {dpp} {DPPM}")
    for sw in ("v_permlane32_swap_b32", "v_permlane16_swap_b32"):
        for z in (ZG, ZR): a(f"v_mov_b32 v{z+2}, v{z}")
        for z in (ZG, ZR): a(f"{sw} v{z}, v{z+2}")
        for z in (ZG, ZR): a(f"v_add_f32 v{z}, v{z}, v{z+2}")
    def rnd2(r0, r1, tmp):
        a(f"v_cvt_pk_bf16_f32 v{tmp}, v{r0}, v{r1}")
        a(f"v_lshlrev_b32 v{r0}, 16, v{tmp}")
        a(f"v_and_b32 v{r1}, 0xffff0000, v{tmp}")
    def sigmoid(dst, src):
        a(f"v_mul_f32 v{dst}, {f2u(-LOG2E):#x}, v{src}")
        a(f"v_exp_f32 v{dst}, v{dst}")
        a(f"v_add_f32 v{dst}, 1.0, v{dst}")
        a(f"v_rcp_f32 v{dst}, v{dst}")
    rnd2(ZG, ZR, t)
    sigmoid(ZG, ZG); sigmoid(ZR, ZR)
    rnd2(ZG, ZR, t)
    a(f"v_mov_b32 v{G_}, v{ZG}")
    a(f"v_sub_f32 v{t+1}, 1.0, v{ZG}")
    a(f"v_cvt_pk_bf16_f32 v{t}, v{t+1}, v{t+1}")
    a(f"v_lshlrev_b32 v{t+1}, 16, v{t}")
    a(f"v_mul_f32 v{GR_}, v{t+1}, v{ZR}")
    a("s_cmp_eq_u32 s33, 28")
    a("s_cselect_b32 s35, 1.0, 0")
    a(f"v_mul_f32 v{t+1}, s35, v{t+1}")
    a(f"v_lshlrev_b32 v{YB}, 16, v{XR}")
    a(f"v_and_b32 v{YB+1}, 0xffff0000, v{XR}")
    a(f"v_mul_f32 v{YB}, v{YB}, v{t+1}")
    a(f"v_mul_f32 v{YB+1}, v{YB+1}, v{t+1}")
    a("v_mov_b32 v28, 1")
    a(f"s_cmp_lt_u32 s33, {0 if 'f' in abl else 28}")
    a("s_cbranch_scc1 L_ffn")
    a("s_mov_b64 exec, 1")
    a(f"ds_add_u32 v{CNTA}, v28")
    a("s_mov_b64 exec, -1")
    a("s_branch L_noffn")
    a.label("L_ffn")
    st["limit"] = len(stream)
    if not roll: issue_until(int(Dh))
    for p in range(16):
        k = 64 + 2 * p
        tt = TP + (p % 2) * 8
        perm_pair(k, tt)
        if not roll: issue_until(int(Dh))
        dots(XP, tt, p)
    reduce8(ACC)
    a(f"ds_write_b64 v1, {vr(ACC,2)} offset:{L_FPART}")
    a("s_waitcnt lgkmcnt(0)")
    a("s_mov_b64 exec, 1")
    a(f"ds_add_u32 v{CNTA}, v28")
    a("s_mov_b64 exec, -1")
    a("s_mov_b32 s59, 0x400000")
    a.label("L_fwait")
    a(f"ds_read_b32 v29, v{CNTA}")
    a("s_waitcnt lgkmcnt(0)")
    a("v_readfirstlane_b32 s35, v29")
    a(f"s_cmp_ge_u32 s35, {0 if pure else NH}")
    a("s_cbranch_scc1 L_fgo")
    a("s_sleep 8")
    a("s_sub_u32 s59, s59, 1")
    a("s_cbranch_scc0 L_fwait")
    a.label("L_fgo")
    a("v_and_b32 v5, 0xff, v4")
    t = TP
    for hw in range(4):
        a(f"ds_read_b64 {vr(t+4*hw,2)}, v5 offset:{L_FPART + hw*512}")
        a(f"ds_read_b64 {vr(t+4*hw+2,2)}, v5 offset:{L_FPART + hw*512 + 256}")
    for j in range(8): a(f"v_mov_b32 v{ACC+j}, 0")
    a("s_waitcnt lgkmcnt(0)")
    for hw in (1, 2, 3):
        a(f"v_pk_add_f32 {vr(t,2)}, {vr(t,2)}, {vr(t+4*hw,2)}")
        a(f"v_pk_add_f32 {vr(t+2,2)}, {vr(t+2,2)}, {vr(t+4*hw+2,2)}")
    rnd2(t, t + 1, t + 4)
    rnd2(t + 2, t + 3, t + 5)
    sigmoid(t + 6, t); sigmoid(t + 7, t + 1)
    a(f"v_mul_f32 v{t}, v{t}, v{t+6}")
    a(f"v_mul_f32 v{t+1}, v{t+1}, v{t+7}")
    rnd2(t, t + 1, t + 4)
    a(f"v_mul_f32 v{t}, v{t}, v{t+2}")
    a(f"v_mul_f32 v{t+1}, v{t+1}, v{t+3}")
    a(f"v_cvt_pk_bf16_f32 v{HP}, v{t}, v{t+1}")
    for p in range(8):
        k = 96 + 2 * p
        tt = TP + (p % 2) * 8
        perm_pair(k, tt)
        if not roll: issue_until(int(Dh))
        dots(HP, tt, p)
    reduce8(ACC)
    a(f"v_fmac_f32 v{YB}, v{ACC}, v{GR_}")
    a(f"v_fmac_f32 v{YB+1}, v{ACC+1}, v{GR_}")
    for j in range(8): a(f"v_mov_b32 v{ACC+j}, 0")
    a.label("L_noffn")
    assert not vm.q
    a("v_lshlrev_b32 v5, 3, v0")
    a("v_mov_b32 v6, 0")
    a("v_lshrrev_b32 v7, 1, v4")
    a("s_lshl_b32 s51, s3, 8")
    GO = 248 - 16 + 16
    if ending == "e3":
        D = ACC + 4
        CK, GOF, OOF, CNT = 16, 28, 29, 30
        NL = 16 // R
        GB = 3 if R == 4 else 2
        T0 = 32 - R
        a(f"v_lshrrev_b32 v252, {GB}, v0")
        a(f"v_and_b32 v253, {(1 << GB) - 1}, v0")
        a(f"v_lshlrev_b32 v{GOF}, 11, v252")
        a(f"v_lshl_add_u32 v{GOF}, v253, 4, v{GOF}")
        a(f"s_lshl_b32 s35, s3, {GB + 4}")
        a(f"v_add_u32 v{GOF}, s35, v{GOF}")
        if R == 4:
            a("s_and_b32 s35, s3, 1"); a("s_lshl_b32 s35, s35, 7")
            a("s_lshr_b32 s45, s3, 1"); a("s_lshl_b32 s45, s45, 2"); a("s_add_u32 s35, s35, s45")
        else:
            a("s_lshl_b32 s35, s3, 6")
        a(f"v_lshl_add_u32 v{OOF}, v253, 4, s35")
        a("v_lshrrev_b32 v252, 5, v0")
        a(f"v_lshl_add_u32 v{OOF}, v252, 3, v{OOF}")
        a("s_lshl_b32 s54, s32, 5")
        a("v_lshlrev_b32 v253, 4, v0")
        a("v_mov_b32 v254, 0x10000")
        a("v_mov_b32 v252, s53")
        a("s_waitcnt lgkmcnt(0)")
        if dry:
            a("s_mov_b32 s58, 1")
            a("s_mov_b64 s[56:57], 0")
            a("v_cmp_ne_u32 vcc, v6, v6")
            a("s_mov_b64 exec, 0")
            a("s_branch L_nb")
        a.label("L_real")
        if dry:
            a("s_mov_b32 s58, 0")
            a("s_mov_b64 s[56:57], -1")
            a("s_mov_b64 exec, -1")
            for j in range(8): a(f"v_mov_b32 v{ACC+j}, 0")
        if stamp in (1, 2, 6): a("s_memrealtime s[92:93]")
        if stamp == 5: a("s_mov_b32 s92, 0")
        a("s_waitcnt vmcnt(0) lgkmcnt(0)")
        a("s_barrier")
        a(f"ds_read_b32 v255, v6 offset:{L_ML+32}")
        a("s_waitcnt lgkmcnt(0)")
        a("v_readfirstlane_b32 s50, v255")
        a("s_andn2_b32 s55, s50, 31")
        a("s_and_b32 s50, s50, 31")
        a(f"s_cmp_lt_u32 s50, {T0}")
        a("s_cbranch_scc1 L_nog")
        a(f"buffer_load_dword v{CNT}, v6, s[84:87], s54 offen sc1")
        a(f"s_sub_u32 s35, s50, {T0}")
        if R == 4:
            a("s_lshl_b32 s51, s35, 8")
            a("s_lshl_b32 s12, s35, 9")
        else:
            a("s_lshr_b32 s51, s35, 1"); a("s_lshl_b32 s51, s51, 8")
            a("s_and_b32 s45, s35, 1"); a("s_lshl_b32 s45, s45, 2"); a("s_add_u32 s51, s51, s45")
            a("s_lshl_b32 s12, s35, 8")
        for k in range(1, NL): a(f"s_add_u32 s{12+k}, s12, {k * 0x10000 // NL}")
        a.label("L_nog")
        a("s_barrier")
        a.label("L_nb")
        if stamp in (1, 2, 5, 6): a("s_memrealtime s[94:95]")
        to = TP
        for w in range(NS): a(f"ds_read_b64 {vr(to+2*w,2)}, v5 offset:{L_OPART + w*512}")
        a("s_waitcnt lgkmcnt(0)" if stamp else "s_waitcnt lgkmcnt(2)")
        a(f"v_pk_add_f32 {vr(to,2)}, {vr(to,2)}, {vr(to+2,2)}")
        a("s_waitcnt lgkmcnt(0)")
        a(f"v_pk_add_f32 {vr(to+4,2)}, {vr(to+4,2)}, {vr(to+6,2)}")
        a(f"v_pk_add_f32 {vr(to,2)}, {vr(to,2)}, {vr(to+4,2)}")
        a(f"v_cvt_pk_bf16_f32 v{HP}, v{to}, v{to+1}")
        for p in range(16): dots(HP, WO + 8 * p, p)
        reduce8(ACC)
        a(f"v_fmac_f32 v{YB}, v{ACC}, v{G_}")
        a(f"v_fmac_f32 v{YB+1}, v{ACC+1}, v{G_}")
        if stamp in (1, 2, 5, 6): a("s_memrealtime s[96:97]"); a("s_memrealtime s[98:99]")
        a(f"v_and_or_b32 v{D}, v{YB}, s52, v{TAG}")
        a(f"v_and_or_b32 v{D+1}, v{YB+1}, s52, v{TAG}")
        a(f"v_and_or_b32 v{D+2}, v{YB}, s52, v{TAG}")
        a(f"v_and_or_b32 v{D+3}, v{YB+1}, s52, v{TAG}")
        a(f"v_permlane32_swap_b32 v{D}, v{D+2}")
        a(f"v_permlane32_swap_b32 v{D+1}, v{D+3}")
        a("s_mov_b32 exec_hi, 0")
        if dry:
            a("s_cmp_eq_u32 s58, 1")
            a("s_cbranch_scc1 L_p0w")
        a(f"buffer_store_dwordx4 {vr(D)}, v253, s[76:79], s49 offen {stf}")
        a(f"s_cmp_lt_u32 s50, {T0}")
        a("s_cbranch_scc1 L_hend")
        a("s_mov_b64 exec, -1")
        a("s_mov_b32 s59, 0x400000")
        a("s_waitcnt vmcnt(1)")
        a.label("L_cnt")
        a(f"v_readfirstlane_b32 s35, v{CNT}")
        a("s_sub_u32 s35, s35, s55")
        a("s_cmp_ge_u32 s35, 32")
        a("s_cbranch_scc1 L_go")
        a(f"buffer_load_dword v{CNT}, v6, s[84:87], s54 offen sc1")
        a("s_waitcnt vmcnt(0)")
        a("s_sub_u32 s59, s59, 1")
        a("s_cbranch_scc0 L_cnt")
        a("s_branch L_fail")
        a.label("L_go")
        def gather(st_i):
            for k in range(NL): a(f"buffer_load_dwordx4 {vr(RING+16*st_i+4*k)}, v{GOF}, s[76:79], s{12+k} offen {gaf}")
        for i in range(nset - 1):
            gather(i)
            if pgap: a(f"s_nop {pgap}")
        a.label("L_poll")
        for i in range(nset):
            gather((i + nset - 1) % nset)
            if i == 0: a.label("L_p0w")
            b = RING + 16 * i
            if stamp == 5: a("s_add_u32 s92, s92, 1")
            if R == 8:
                a(f"s_waitcnt vmcnt({2*(nset-1)})")
                a(f"v_xor_b32 v{CK}, v{b}, v{TAG}")
                a(f"v_xor_b32 v{CK+1}, v{b+1}, v{TAG}")
                for j in range(2, 8): a(f"v_bitop3_b32 v{CK+j%2}, v{CK+j%2}, v{b+j}, v{TAG} bitop3:0xf6")
                a(f"v_pk_add_f32 {vr(ACC,2)}, {vr(b,2)}, {vr(b+4,2)}")
                a(f"v_or_b32 v{CK}, v{CK}, v{CK+1}")
                a(f"v_pk_add_f32 {vr(ACC+2,2)}, {vr(b+2,2)}, {vr(b+6,2)}")
                a(f"v_cmp_ne_u32_sdwa vcc, v{CK}, v6 src0_sel:BYTE_0 src1_sel:DWORD")
            else:
                a(f"s_waitcnt vmcnt({4*(nset-1)+2})")
                a(f"v_xor_b32 v{CK}, v{b}, v{TAG}")
                a(f"v_xor_b32 v{CK+1}, v{b+1}, v{TAG}")
                for j in range(2, 8): a(f"v_bitop3_b32 v{CK+j%2}, v{CK+j%2}, v{b+j}, v{TAG} bitop3:0xf6")
                a(f"v_pk_add_f32 {vr(ACC,2)}, {vr(b,2)}, {vr(b+4,2)}")
                a(f"v_pk_add_f32 {vr(ACC+2,2)}, {vr(b+2,2)}, {vr(b+6,2)}")
                a(f"s_waitcnt vmcnt({4*(nset-1)})")
                for j in range(8, 16): a(f"v_bitop3_b32 v{CK+j%2}, v{CK+j%2}, v{b+j}, v{TAG} bitop3:0xf6")
                a(f"v_pk_add_f32 {vr(ACC+4,2)}, {vr(b+8,2)}, {vr(b+12,2)}")
                a(f"v_or_b32 v{CK}, v{CK}, v{CK+1}")
                a(f"v_pk_add_f32 {vr(ACC+6,2)}, {vr(b+10,2)}, {vr(b+14,2)}")
                a(f"v_cmp_ne_u32_sdwa vcc, v{CK}, v6 src0_sel:BYTE_0 src1_sel:DWORD")
                a(f"v_pk_add_f32 {vr(ACC,2)}, {vr(ACC,2)}, {vr(ACC+4,2)}")
                a(f"v_pk_add_f32 {vr(ACC+2,2)}, {vr(ACC+2,2)}, {vr(ACC+6,2)}")
            a("s_cbranch_vccz L_ok")
            if dry: a("s_cbranch_execz L_ok")
        a("s_sub_u32 s59, s59, 1")
        a("s_cbranch_scc0 L_poll")
        a.label("L_fail")
        if stamp == 7:
            a("v_mov_b32 v8, 0x4000"); a("v_mov_b32 v9, s50")
            a("s_mov_b64 exec, 1")
            a("buffer_atomic_add v8, v6, s[84:87], 0 offen offset:4 sc1")
        a("s_branch L_hend")
        a.label("L_ok")
        a("s_nop 0")
        if stamp == 5: a("s_waitcnt lgkmcnt(0)"); a("s_memrealtime s[98:99]")
        a(f"v_permlane32_swap_b32 v{ACC}, v{ACC+2}")
        a(f"v_permlane32_swap_b32 v{ACC+1}, v{ACC+3}")
        a(f"v_pk_add_f32 {vr(ACC,2)}, {vr(ACC,2)}, {vr(ACC+2,2)}")
        a(f"v_mov_b32 v{ACC+2}, v{ACC}")
        a(f"v_mov_b32 v{ACC+3}, v{ACC+1}")
        a(f"v_permlane16_swap_b32 v{ACC}, v{ACC+2}")
        a(f"v_permlane16_swap_b32 v{ACC+1}, v{ACC+3}")
        a(f"v_pk_add_f32 {vr(ACC,2)}, {vr(ACC,2)}, {vr(ACC+2,2)}")
        a(f"v_add_f32_dpp v{ACC}, v{ACC}, v{ACC} row_ror:8 {DPPM}")
        a(f"v_add_f32_dpp v{ACC+1}, v{ACC+1}, v{ACC+1} row_ror:8 {DPPM}")
        if R == 8:
            a(f"v_add_f32_dpp v{ACC}, v{ACC}, v{ACC} row_ror:4 {DPPM}")
            a(f"v_add_f32_dpp v{ACC+1}, v{ACC+1}, v{ACC+1} row_ror:4 {DPPM}")
        a(f"v_cvt_pk_bf16_f32 v{ACC}, v{ACC}, v{ACC+1}")
        if dry:
            a("s_cmp_eq_u32 s58, 1")
            a("s_cbranch_scc1 L_real")
        a(f"s_mov_b32 exec_lo, {(1 << (1 << GB)) - 1}")
        a(f"s_mov_b32 exec_hi, {(1 << (1 << GB)) - 1}")
        a(f"buffer_store_dword v{ACC}, v{OOF}, s[80:83], s51 offen {oflags}")
        a("s_cmp_lg_u32 s50, 31")
        a("s_cbranch_scc1 L_hend")
        a("s_cmp_lg_u32 s3, 0")
        a("s_cbranch_scc1 L_hend")
        a("s_mov_b64 exec, 1")
        a(f"buffer_store_dword v252, v254, s[76:79], 0 offen {oflags}")
    else:
        if stamp in (1, 2, 6): a("s_memrealtime s[92:93]")
        a("s_waitcnt lgkmcnt(0)")
        a("s_barrier")
        if stamp in (1, 2, 5, 6): a("s_memrealtime s[94:95]")
        tm, tl, to = TP, TP + 4, TP + 8
        if ending != "e0": a(f"ds_read_b32 v255, v6 offset:{L_ML+32}")
        a(f"ds_read_b128 {vr(tm)}, v6 offset:{L_ML}")
        a(f"ds_read_b128 {vr(tl)}, v6 offset:{L_ML+16}")
        for w in range(NS): a(f"ds_read_b64 {vr(to+2*w,2)}, v5 offset:{L_OPART + w*512}")
        def gather(base):
            for k in range(16): a(f"buffer_load_dwordx4 {vr(base+4*k)}, v{goff[k]}, s[76:79], 0 offen sc1")
        if ending != "e0":
            a("s_waitcnt lgkmcnt(0)" if stamp else "s_waitcnt lgkmcnt(6)")
            a("v_readfirstlane_b32 s50, v255")
            a("s_cmp_lg_u32 s50, 31")
            a("s_cbranch_scc1 L_nog")
            gather(RING)
            a.label("L_nog")
        a("s_waitcnt lgkmcnt(0)" if stamp else "s_waitcnt lgkmcnt(5)")
        MX = 16
        a(f"v_max3_f32 v{MX}, v{tm}, v{tm+1}, v{tm+2}")
        a(f"v_max_f32 v{MX}, v{MX}, v{tm+3}")
        a(f"v_mul_f32 v{MX}, s48, v{MX}")
        for w in range(NS): a(f"v_fma_f32 v{tm+w}, v{tm+w}, s48, -v{MX}")
        for w in range(NS): a(f"v_exp_f32 v{tm+w}, v{tm+w}")
        a("s_waitcnt lgkmcnt(0)")
        a(f"v_mul_f32 v{MX+1}, v{tm}, v{tl}")
        a(f"v_mul_f32 v{MX+2}, v{tm}, v{to}")
        a(f"v_mul_f32 v{MX+3}, v{tm}, v{to+1}")
        for w in range(1, NS):
            a(f"v_fmac_f32 v{MX+1}, v{tm+w}, v{tl+w}")
            a(f"v_fmac_f32 v{MX+2}, v{tm+w}, v{to+2*w}")
            a(f"v_fmac_f32 v{MX+3}, v{tm+w}, v{to+2*w+1}")
        a(f"v_rcp_f32 v{MX+1}, v{MX+1}")
        a(f"v_mul_f32 v{MX+2}, v{MX+2}, v{MX+1}")
        a(f"v_mul_f32 v{MX+3}, v{MX+3}, v{MX+1}")
        a(f"v_cvt_pk_bf16_f32 v{HP}, v{MX+2}, v{MX+3}")
        for p in range(16): dots(HP, WO + 8 * p, p)
        reduce8(ACC)
        a(f"v_fmac_f32 v{YB}, v{ACC}, v{G_}")
        a(f"v_fmac_f32 v{YB+1}, v{ACC+1}, v{G_}")
        D = ACC + 4
        def pack_store():
            if ending == "e2":
                a(f"v_and_or_b32 v{D}, v{YB}, s52, v{TAG}")
                a(f"v_and_or_b32 v{D+1}, v{YB+1}, s52, v{TAG}")
            else:
                a(f"v_min_u32 v{D}, -2, v{YB}")
                a(f"v_min_u32 v{D+1}, -2, v{YB+1}")
            a(f"v_mov_b32 v{D+2}, v{D}")
            a(f"v_mov_b32 v{D+3}, v{D+1}")
            a("v_lshlrev_b32 v5, 4, v0")
            a(f"v_permlane32_swap_b32 v{D}, v{D+2}")
            a(f"v_permlane32_swap_b32 v{D+1}, v{D+3}")
            a("s_mov_b32 exec_hi, 0")
            if "s" not in abl: a(f"buffer_store_dwordx4 {vr(D)}, v5, s[76:79], s49 offen sc1")
            a("s_mov_b64 exec, -1")
        def sum16(base, dst, waits):
            CK = ACC + 4
            if ending == "e2":
                a(f"v_mov_b32 v{CK}, 0")
                a(f"s_waitcnt vmcnt({waits + 15})")
                a("s_mov_b32 exec_lo, 0")
                for j in range(4): a(f"v_bitop3_b32 v{CK}, v{CK}, v{base+j}, v{TAG} bitop3:0xf6")
                a("s_mov_b64 exec, -1")
            for k in range(1, 16):
                if waits is not None: a(f"s_waitcnt vmcnt({waits + 15 - k})")
                s0 = base if k == 1 else dst
                if ending == "e2":
                    for j in range(4): a(f"v_bitop3_b32 v{CK}, v{CK}, v{base+4*k+j}, v{TAG} bitop3:0xf6")
                a(f"v_pk_add_f32 {vr(dst,2)}, {vr(s0,2)}, {vr(base+4*k,2)}")
                a(f"v_pk_add_f32 {vr(dst+2,2)}, {vr(s0+2,2)}, {vr(base+4*k+2,2)}")
        if ending == "e0":
            pack_store()
            if stamp in (1, 2, 6): a("s_memrealtime s[96:97]")
            a("s_waitcnt vmcnt(0)")
            a("s_barrier")
            a("s_cmp_lg_u32 s3, 0")
            a("s_cbranch_scc1 L_watom")
            a("s_lshl_b32 s35, s32, 5")
            a("v_mov_b32 v28, 1")
            a("s_mov_b64 exec, 1")
            a("buffer_atomic_add v28, v6, s[84:87], s35 offen sc0 sc1")
            a("s_waitcnt vmcnt(0)")
            a(f"ds_write_b32 v6, v28 offset:{L_FLAG}")
            a("s_waitcnt lgkmcnt(0)")
            a("s_mov_b64 exec, -1")
            a.label("L_watom")
            a("s_barrier")
            a(f"ds_read_b32 v28, v6 offset:{L_FLAG}")
            a("s_waitcnt lgkmcnt(0)")
            a("v_readfirstlane_b32 s35, v28")
            a("s_cmp_lg_u32 s35, 31")
            if stamp in (1, 2, 6): a("s_memrealtime s[98:99]")
            a("s_cbranch_scc1 L_hend")
            a("v_and_b32 v28, 31, v0")
            a("v_lshlrev_b32 v28, 4, v28")
            a("v_lshrrev_b32 v29, 5, v0")
            a("v_lshl_add_u32 v28, v29, 11, v28")
            a("s_lshl_b32 s35, s3, 9")
            for k in range(16):
                a(f"buffer_load_dwordx4 {vr(WO+4*k)}, v28, s[76:79], s35 offen sc1")
                a("s_add_u32 s35, s35, 4096")
            sum16(WO, ACC, 0)
            a(f"v_permlane32_swap_b32 v{ACC}, v{ACC+2}")
            a(f"v_permlane32_swap_b32 v{ACC+1}, v{ACC+3}")
            a(f"v_pk_add_f32 {vr(ACC,2)}, {vr(ACC,2)}, {vr(ACC+2,2)}")
            a(f"v_cvt_pk_bf16_f32 v{ACC}, v{ACC}, v{ACC+1}")
            a(f"buffer_store_dword v{ACC}, v7, s[80:83], s51 offen {oflags}")
        else:
            if stamp in (1, 2, 5, 6): a("s_memrealtime s[96:97]"); a("s_memrealtime s[98:99]")
            if stamp == 5: a("s_mov_b32 s92, 0")
            a("s_cmp_eq_u32 s50, 31")
            a("s_cbranch_scc1 L_red")
            pack_store()
            a("s_branch L_hend")
            a.label("L_red")
            SB, SC = WO, WO + 64
            def check(base, ok, tag):
                if stamp == 5: a("s_add_u32 s92, s92, 1")
                if ending == "e2":
                    a(f"v_and_b32 v{ACC+4}, 0xff, v{ACC+4}")
                    a(f"v_cmp_ne_u32 vcc, 0, v{ACC+4}")
                    a(f"s_cbranch_vccz {ok}")
                    return
                a(f"v_add_f32 v{ACC+4}, v{ACC}, v{ACC+1}")
                a(f"v_add_f32 v{ACC+5}, v{ACC+2}, v{ACC+3}")
                a(f"v_cmp_u_f32 vcc, v{ACC+4}, v{ACC+5}")
                a(f"s_cbranch_vccz {ok}")
                a(f"v_max_u32 v{ACC+4}, v{base}, v{base+1}")
                for k in range(2, 64, 2): a(f"v_max3_u32 v{ACC+4}, v{base+k}, v{base+k+1}, v{ACC+4}")
                a(f"v_cmp_eq_u32 vcc, -1, v{ACC+4}")
                a(f"s_cbranch_vccz {ok}")
            gather(SB)
            sum16(RING, ACC, 16)
            check(RING, "L_ok", "a")
            a.label("L_poll")
            gather(SC)
            sum16(SB, ACC, 16)
            check(SB, "L_ok", "b")
            gather(SB)
            sum16(SC, ACC, 16)
            check(SC, "L_ok", "c")
            a("s_branch L_poll")
            a.label("L_ok")
            if stamp == 5: a("s_waitcnt lgkmcnt(0)"); a("s_memrealtime s[98:99]")
            a(f"v_permlane32_swap_b32 v{ACC}, v{ACC+2}")
            a(f"v_permlane32_swap_b32 v{ACC+1}, v{ACC+3}")
            a(f"v_pk_add_f32 {vr(ACC,2)}, {vr(ACC,2)}, {vr(ACC+2,2)}")
            a(f"v_pk_add_f32 {vr(ACC,2)}, {vr(ACC,2)}, {vr(YB,2)}")
            a(f"v_cvt_pk_bf16_f32 v{ACC}, v{ACC}, v{ACC+1}")
            a(f"buffer_store_dword v{ACC}, v7, s[80:83], s51 offen {oflags}")
            if ending == "e2":
                a("s_cmp_lg_u32 s3, 0")
                a("s_cbranch_scc1 L_hend")
                a(f"v_mov_b32 v{ACC+4}, 0x10000")
                a(f"v_mov_b32 v{ACC+5}, s53")
                a("s_mov_b64 exec, 1")
                a(f"buffer_store_dword v{ACC+5}, v{ACC+4}, s[76:79], 0 offen")
                a("s_mov_b64 exec, -1")
    a.label("L_hend")
    if dbl:
        a("s_waitcnt vmcnt(0)")
        a("s_memrealtime s[92:93]")
        a("s_waitcnt lgkmcnt(0)")
        if dbl == 1: a("s_sub_u32 s94, s92, s88")
        else: a("s_sub_u32 s94, s90, s88"); a("s_mul_i32 s94, s94, 4")
        a.label("L_dbl")
        a("s_memrealtime s[96:97]")
        a("s_waitcnt lgkmcnt(0)")
        a("s_sub_u32 s95, s96, s92")
        a("s_cmp_lt_u32 s95, s94")
        a("s_cbranch_scc1 L_dbl")
    if stamp and stamp != 7:
        a("s_waitcnt vmcnt(0)")
        a("s_memrealtime s[100:101]")
        a("s_cmp_lg_u32 s3, 0")
        a("s_cbranch_scc1 L_done")
        a("s_mov_b64 exec, 1")
        a("s_getreg_b32 s35, hwreg(HW_REG_XCC_ID)")
        a("s_and_b32 s35, s35, 15")
        a("s_getreg_b32 s44, hwreg(HW_REG_HW_ID)")
        a("s_lshl_b32 s44, s44, 4")
        a("s_or_b32 s35, s35, s44")
        a("s_waitcnt lgkmcnt(0)")
        for i, r in enumerate([88, 90, 92, 94, 96, 98, 100]): a(f"v_mov_b32 v{8+i}, s{r}")
        a("v_mov_b32 v15, s35")
        if stamp == 6:
            a("v_not_b32 v16, v8")
            a("v_not_b32 v17, v11")
            a("v_mov_b32 v3, 0")
            for i, r in enumerate([16, 8, 9, 10, 17, 11, 14]):
                a(f"buffer_atomic_umax v{r}, v3, s[84:87], 0 offen offset:{4*i} sc1")
        else:
            a("s_lshl_b32 s35, s2, 8")
            a("s_add_u32 s35, s35, 0x100000")
            a("v_mov_b32 v3, s35")
            a("global_store_dwordx4 v3, v[8:11], s[30:31]")
            a("global_store_dwordx4 v3, v[12:15], s[30:31] offset:16")
    a.label("L_done")
    a("s_endpgm")
    a.pad()
    hdr = HEADER.replace("@@LAUNCH@@", f"; @launch grid=(256,1,1) block=({(NS+NH)*64},1,1) lds={L_KV + 4*PL*8192 if PL else LDS_BYTES}")
    tail = f""".section .rodata,"a"
.p2align 6
.amdhsa_kernel {KN}
  .amdhsa_next_free_vgpr 256
  .amdhsa_next_free_sgpr 102
  .amdhsa_accum_offset 256
  .amdhsa_group_segment_fixed_size 0
  .amdhsa_kernarg_size 112
  .amdhsa_user_sgpr_count 2
  .amdhsa_user_sgpr_kernarg_segment_ptr 1
  .amdhsa_system_sgpr_workgroup_id_x 1
.end_amdhsa_kernel
"""
    return hdr + DOC + a.text() + tail

if __name__ == "__main__":
    out = sys.argv[1]
    kw = {}
    for s in sys.argv[2:]:
        k, v = s.split("=")
        if k in ("winp", "sched", "winf", "abl", "ending", "wflags", "kvflags", "qflags", "Dq", "Dh", "boost", "order", "pure4", "p4win", "p4wo", "ctl", "cflags", "oflags", "rcols", "wfin", "pfl", "stf", "gaf"): v = v.replace("+", " ")
        else: v = int(v)
        kw[k] = v
    open(out, "w").write(gen(**kw))
```

```python
import sys, os, struct
sys.path.insert(0, os.path.dirname(os.path.abspath(__file__)))
from asmlib import Asm
KN = "gated_mix__mha_block_cached__moe_arch_mod__decode_kernel"
HEADER = open(os.path.join(os.path.dirname(os.path.abspath(__file__)), "header.txt")).read()


DOC = """; ---------------------------------------------------------------------------------------------
; Fused decode step: out = g*attn(x) + (1-g)*(x + sigmoid(x.w_r)*SwiGLU(x)),  B=8 H=32 Sk=4096 Dh=128
;   4 helper waves : q = x.Wq[:,h], Wo[h] slice -> registers, gates, 64-column slice of the SwiGLU FFN,
; ---------------------------------------------------------------------------------------------
"""

def f2u(x): return struct.unpack("<I", struct.pack("<f", x))[0]
LOG2E = 1.4426950408889634
CSCALE = LOG2E * (128 ** -0.5)

L_QPART = 0
L_FPART = 2048
L_OPART = 4096
L_ML    = 6144
L_CNT   = 6208
L_FLAG  = 6212
L_SC = 6400
L_KV = 6400 + 16384
LDS_BYTES = 6272

class VM:
    def __init__(self, a): self.a = a; self.q = []; self.seen = set()
    def issue(self, tag): self.q.append(tag); self.seen.add(tag)
    def wait(self, tag):
        assert tag in self.seen, tag
        if tag not in self.q: return
        idx = max(i for i, t in enumerate(self.q) if t == tag)
        n = len(self.q) - 1 - idx
        assert n <= 63
        self.a(f"s_waitcnt vmcnt({n})")
        self.q = self.q[idx+1:]
    def pace(self, n):
        if len(self.q) > n - 1:
            self.a(f"s_waitcnt vmcnt({n-1})")
            self.q = self.q[len(self.q) - (n - 1):] if n > 1 else []
    def waitall(self):
        self.a("s_waitcnt vmcnt(0)"); self.q = []

def vr(b, n=4): return f"v[{b}:{b+n-1}]"
DPPM = "row_mask:0xf bank_mask:0xf"
def pat(s):
    s = str(s)
    return [int(x) for x in s.split("_")] if "_" in s else [int(c) for c in s]

def gen(PRO=5, winp="56", sched="-1:5:5", fin=0, winf=8, lagf=2, Dq=8, Dh=2, wflags="nt", kvflags="nt",
        stamp=0, ending="e0", abl="", tlead=1, mapmode=0, qflags=None, roll=1, PL=0, boost="", il=1, order="KKKKVVVV", pure=0, pureU=8, sfirst=0, sprio=0, pure4="", p4win="5", p4wo=None, ctl="", cflags="sc1", cearly=0, dry=1, oflags="", win0=0, U=1, b2a=2, ra=0, rb=0, rsh=15, rcols="", pm=0, sp=0, nset=2, pgap=0, nV=6, wfin="", pf=0, pfl="", pfw=7, ep1=1, stf="sc1", gaf="sc1", R=4, touch=0, dbl=0, fb=""):
    if qflags is None: qflags = wflags
    NS, NH, NG = 4, 4, 64
    a = Asm()
    a("s_cmp_ge_u32 s2, 256")
    a("s_cbranch_scc1 L_done")
    a("s_load_dwordx16 s[4:19], s[0:1], 0")
    a("s_load_dwordx8 s[20:27], s[0:1], 64")
    a("s_load_dwordx4 s[28:31], s[0:1], 96")
    if (stamp and stamp != 7) or dbl: a("s_memrealtime s[88:89]")
    a("v_lshrrev_b32 v1, 6, v0")
    a("v_and_b32 v0, 63, v0")
    a("v_readfirstlane_b32 s3, v1")
    if mapmode == 0:
        a("s_and_b32 s33, s2, 7")
        a("s_lshl_b32 s33, s33, 2")
        a("s_lshr_b32 s32, s2, 3")
        a("s_and_b32 s34, s32, 3")
        a("s_add_u32 s33, s33, s34")
        a("s_lshr_b32 s32, s32, 2")
    elif mapmode == 1:
        a("s_and_b32 s33, s2, 6")
        a("s_lshl_b32 s33, s33, 2")
        a("s_bfe_u32 s34, s2, 0x30003")
        a("s_add_u32 s33, s33, s34")
        a("s_and_b32 s32, s2, 1")
        a("s_lshl_b32 s32, s32, 2")
        a("s_lshr_b32 s34, s2, 6")
        a("s_add_u32 s32, s32, s34")
    elif mapmode == 2:
        a("s_and_b32 s33, s2, 3")
        a("s_lshl_b32 s33, s33, 3")
        a("s_bfe_u32 s34, s2, 0x30003")
        a("s_add_u32 s33, s33, s34")
        a("s_and_b32 s32, s2, 4")
        a("s_lshr_b32 s34, s2, 6")
        a("s_add_u32 s32, s32, s34")
    a("s_mov_b32 s46, 0x05040100")
    a("s_mov_b32 s47, 0x07060302")
    a(f"s_mov_b32 s48, {f2u(CSCALE):#x}")
    if sfirst: a("s_xor_b32 s3, s3, 4")
    a(f"s_cmp_lt_u32 s3, {NH}")
    a("s_cbranch_scc0 L_stream")

    def reduce8(b):
        for j in range(4): a(f"v_permlane32_swap_b32 v{b+j}, v{b+j+4}")
        for j in range(0, 4, 2): a(f"v_pk_add_f32 {vr(b+j,2)}, {vr(b+j,2)}, {vr(b+j+4,2)}")
        for j in range(2): a(f"v_permlane16_swap_b32 v{b+j}, v{b+j+2}")
        a(f"v_pk_add_f32 {vr(b,2)}, {vr(b,2)}, {vr(b+2,2)}")

    vm = vmh = VM(a)
    a("v_and_b32 v2, 15, v0")
    a("v_lshrrev_b32 v3, 4, v0")
    RG_ROWS, HW_ROWS, P_ROWS = (32, 128, 2) if sp else (2, 8, 32)
    a(f"v_lshlrev_b32 v5, {13 + RG_ROWS.bit_length() - 1}, v3")
    a("v_lshl_add_u32 v5, v2, 4, v5")
    a("v_add_u32 v6, 0x2000, v5")
    a(f"s_lshl_b32 s44, s3, {13 + HW_ROWS.bit_length() - 1}")
    a("s_lshl_b32 s35, s33, 8")
    a("s_add_u32 s44, s44, s35")
    a(f"v_lshlrev_b32 v4, {P_ROWS.bit_length()}, v2")
    a(f"v_lshl_add_u32 v4, v3, {RG_ROWS.bit_length()}, v4")
    a(f"s_lshl_b32 s45, s3, {HW_ROWS.bit_length()}")
    a("s_lshl_b32 s35, s32, 10")
    a("s_mov_b32 s38, 1024"); a("s_mov_b32 s39, 0x20000")
    a("s_mov_b32 s42, 0x400000"); a("s_mov_b32 s43, 0x20000")
    if "q" in abl: a("s_mov_b32 s42, 0")
    a("s_waitcnt lgkmcnt(0)")
    a("s_add_u32 s36, s4, s35"); a("s_addc_u32 s37, s5, 0")
    a("s_mov_b32 s40, s10"); a("s_mov_b32 s41, s11")
    ACC = 8
    XP = 16
    GA = 18
    G_, GR_, YB, HP, CNTA, XR = 20, 21, 22, 24, 25, 26
    TP = 40
    RING = 56
    WO = 120
    GOFF = 24 + 8
    NR = 16
    stream = []
    st = {"issued": 0, "consumed": 0, "limit": 0}
    def bload(srd, voff, soff, imm, post=None):
        def f(dst):
            a(f"buffer_load_dwordx4 {vr(dst)}, {voff}, {srd}, {soff} offen offset:{imm} {qflags if srd == 's[40:43]' else wflags}")
            if post: a(post)
        return f
    for p in range(16):
        stream.append(bload("s[40:43]", "v5", "s44", 0))
        stream.append(bload("s[40:43]", "v6", "s44", 0, f"s_add_u32 s44, s44, {P_ROWS*8192}"))
    def gload(imm, adv):
        def f(dst):
            a(f"global_load_dwordx4 {vr(dst)}, {vr(GA,2)}, off offset:{imm} {wflags}")
            if adv:
                a(f"v_add_co_u32 v{GA}, vcc, {P_ROWS*3584}, v{GA}")
                a(f"v_addc_co_u32 v{GA+1}, vcc, 0, v{GA+1}, vcc")
        return f
    for p in range(16):
        stream.append(bload("s[64:67]", "v7", "s51", 0))
        stream.append(bload("s[64:67]", "v7", "s51", 1024, "s_add_u32 s51, s51, 8192"))
    for p in range(16):
        stream.append(gload(0, False)); stream.append(gload(3584, p < 15))
    for p in range(8):
        stream.append(bload("s[60:63]", "v7", "s50", 0))
        stream.append(bload("s[60:63]", "v7", "s50", 1024, "s_add_u32 s50, s50, 8192"))
    def issue_one():
        k = st["issued"]
        stream[k](RING + (k % NR) * 4)
        vmh.issue(("W", k))
        st["issued"] += 1
    def issue_until(depth):
        while st["issued"] < st["limit"] and st["issued"] - st["consumed"] < depth:
            issue_one()
    def depth_for(k):
        d = pat(Dq) if k < 32 else pat(Dh)
        return d[k % len(d)]
    def advance(kneed):
        while ("W", kneed) not in vmh.seen or ("W", kneed) in vmh.q:
            k = st["issued"]
            if k < st["limit"] and k - st["consumed"] < NR:
                vmh.pace(depth_for(k))
                issue_one()
            else:
                vmh.wait(("W", kneed))
    st["limit"] = 64
    a(f"buffer_load_dword v{XP}, v4, s[36:39], s45 offen")
    vm.issue("XQ")
    issue_until(max(pat(Dq)) if roll else int(Dq))
    a("s_branch L_helper")

    a.label("L_stream")
    vm = VM(a)
    assert ending == "e3"
    a(f"s_sub_u32 s3, s3, {NH}")
    if pm:
        a("s_and_b32 s35, s3, 1"); a("s_lshl_b32 s35, s35, 13")
        a("s_lshr_b32 s34, s3, 1"); a("s_lshl_b32 s34, s34, 10"); a("s_add_u32 s35, s35, s34")
    else:
        a(f"s_lshl_b32 s35, s3, {10 + (U.bit_length() - 1)}")
    a("v_lshlrev_b32 v1, 4, v0")
    a("v_add_u32 v1, s35, v1")
    a("s_lshl_b32 s34, s32, 5")
    a("s_add_u32 s34, s34, s33")
    a("s_lshl_b32 s35, s34, 20")
    a("s_mov_b32 s38, 0x100000")
    a("s_mov_b32 s39, 0x20000")
    a("s_mov_b32 s42, 0x100000")
    a("s_mov_b32 s43, 0x20000")
    rot = ra or rb or rcols
    if rcols:
        a("s_mov_b32 s44, 0")
        for p, ch in enumerate(rcols.lstrip("c")):
            if int(ch):
                a(f"s_bitcmp1_b32 s34, {p}")
                a(f"s_cselect_b32 s45, {int(ch) << 17}, 0")
                a("s_xor_b32 s44, s44, s45")
    elif rot:
        a("s_and_b32 s44, s2, 7"); a(f"s_mul_i32 s44, s44, {ra}")
        a("s_lshr_b32 s45, s2, 3"); a(f"s_mul_i32 s45, s45, {rb}")
        a("s_add_u32 s44, s44, s45"); a(f"s_lshl_b32 s44, s44, {rsh}"); a("s_and_b32 s44, s44, 0xfffff")
    else:
        a("s_mov_b32 s44, 0")
    if pf:
        a("s_and_b32 s62, s2, 7")
        a("s_lshr_b32 s63, s2, 3")
        a("s_lshl_b32 s63, s63, 2")
        a("s_add_u32 s63, s63, s3")
        a("v_lshlrev_b32 v2, 4, v0")
        a("s_mov_b32 s66, 0x400000"); a("s_mov_b32 s67, 0x20000")
        a("s_mov_b32 s70, 0x400000"); a("s_mov_b32 s71, 0x20000")
        a("s_lshl_b32 s45, s63, 15"); a("s_lshl_b32 s57, s62, 10"); a("s_add_u32 s45, s45, s57")
        a("s_lshl_b32 s84, s62, 19"); a("s_lshl_b32 s57, s63, 12"); a("s_add_u32 s84, s84, s57")
    a("s_waitcnt lgkmcnt(0)")
    if not pf:
        a("s_add_u32 s36, s6, s35")
        a("s_addc_u32 s37, s7, 0")
    BUF = 48
    Q, O, A, UE, WE, SC, M, Lr, T = 4, 8, 16, 24, 26, 28, 30, 31, 32
    PK, AL = 16, 28
    def reg(slot, j): return BUF + slot * 32 + j * 4
    cur = {"wins": pat(winp), "n": 0}
    def setwin(p): cur["wins"] = p; cur["n"] = 0
    def nextwin():
        wins = cur["wins"]; n = wins[cur["n"] % len(wins)]; cur["n"] += 1; return n
    def imm(j): return (j % 2) * 2048 if pm else (j % U) * 1024
    def post(j):
        if pm:
            if j % 2 == 1: a(f"s_add_u32 s44, s44, {4096 if j % 4 == 1 else 12288}")
        elif j % U == U - 1: a(f"s_add_u32 s44, s44, {NS*U*1024}")
        if rot and (j == 7 or rsh < 15): a("s_and_b32 s44, s44, 0xfffff")
    def issue1(slot, j, ten):
        vm.pace(nextwin())
        a(f"buffer_load_dwordx4 {vr(reg(slot,j))}, v1, {'s[36:39]' if ten == 'K' else 's[40:43]'}, s44 offen offset:{imm(j)} {kvflags}")
        vm.issue((slot, j)); post(j)
    def issueL(g, j):
        a(f"s_add_u32 m0, s54, {g*8192 + j*1024 - imm(j)}")
        vm.pace(nextwin())
        a(f"buffer_load_dwordx4 v1, s[36:39], s44 offen offset:{imm(j)} {kvflags} lds")
        vm.issue(("L", g)); post(j)
    def lane_of(i): return ((i & 1) << 3) | (((i >> 1) & 1) << 2) | ((i >> 2) & 1) | (((i >> 3) & 1) << 1)
    def procK(slot, gq, staged=False):
        L = []
        for hf in range(2):
            js = range(4 * hf, 4 * hf + 4)
            if staged:
                if hf == 0: L.append("s_waitcnt lgkmcnt(0)")
            else: L.append(("wait", (slot, 4 * hf + 3)))
            for j in js: L.append(f"v_dot2_f32_bf16 v{A+j}, v{reg(slot,j)}, v{Q}, 0")
            for c in range(1, 4):
                for j in js: L.append(f"v_dot2c_f32_bf16 v{A+j}, v{reg(slot,j)+c}, v{Q+c}")
            b = A + 4 * hf
            for e in range(2): L.append(f"v_add_f32_dpp v{b+e}, v{b+e}, v{b+e} row_ror:8 row_mask:0xf bank_mask:0x3")
            for e in range(2): L.append(f"v_add_f32_dpp v{b+e}, v{b+2+e}, v{b+2+e} row_ror:8 row_mask:0xf bank_mask:0xc")
        D = UE if gq % 2 == 0 else A + 2
        for e in range(2): L.append(f"v_add_f32_dpp v{D+e}, v{A+e}, v{A+e} row_half_mirror row_mask:0xf bank_mask:0x5")
        for e in range(2): L.append(f"v_add_f32_dpp v{D+e}, v{A+4+e}, v{A+4+e} row_half_mirror row_mask:0xf bank_mask:0xa")
        def lvl(d1, d2, mask, qp, R):
            for e in range(2):
                L.append(f"v_cndmask_b32 v{T+2*e}, v{d1+e}, v{d2+e}, {mask}")
                L.append(f"v_cndmask_b32 v{T+2*e+1}, v{d2+e}, v{d1+e}, {mask}")
            for e in range(2): L.append(f"v_add_f32_dpp v{R+e}, v{T+2*e+1}, v{T+2*e} {qp} {DPPM}")
        if gq % 2 == 1:
            lvl(UE, A + 2, "s[58:59]", "quad_perm:[1,0,3,2]", WE if gq == 1 else A + 6)
        if gq == 3:
            lvl(WE, A + 6, "s[60:61]", "quad_perm:[2,3,0,1]", SC)
            L.append(f"ds_write_b64 v2, {vr(SC,2)}")
            L.append(f"v_max3_f32 v{M}, v{SC}, v{SC+1}, v{M}")
            L.append("v_add_u32 v2, 0x200, v2")
        return L
    def procV(slot, gq):
        L = []
        for t in range(4):
            tt = T + (t % 2) * 8
            L.append(("wait", (slot, 2 * t + 1)))
            for c in range(4):
                L.append(f"v_perm_b32 v{tt+2*c}, v{reg(slot,2*t+1)+c}, v{reg(slot,2*t)+c}, s46")
                L.append(f"v_perm_b32 v{tt+2*c+1}, v{reg(slot,2*t+1)+c}, v{reg(slot,2*t)+c}, s47")
            for j in range(8): L.append(f"v_dot2c_f32_bf16_dpp v{O+j}, v{PK}, v{tt+j} row_newbcast:{lane_of(4*gq+t)} {DPPM}")
        if gq == 3:
            for u in range(7): L.append(f"v_mov_b32 v{PK+u}, v{PK+u+1}")
        return L
    def wave_reduce(r, tmp, op):
        L = []
        for dpp in ("quad_perm:[1,0,3,2]", "quad_perm:[2,3,0,1]", "row_half_mirror", "row_mirror"):
            L.append(f"{op}_dpp v{r}, v{r}, v{r} {dpp} {DPPM}")
        for sw in ("v_permlane32_swap_b32", "v_permlane16_swap_b32"):
            L += [f"v_mov_b32 v{tmp}, v{r}", f"{sw} v{r}, v{tmp}", f"{op} v{r}, v{r}, v{tmp}"]
        return L
    def boundary():
        L = ["v_subrev_u32 v2, 0x1000, v2"]
        for u in range(8): L.append(f"ds_read_b64 {vr(T+2*u,2)}, v2 offset:{u*512}")
        L += wave_reduce(M, SC, "v_max_f32")
        L.append(f"v_mul_f32 v{SC}, s48, v{M}")
        L.append(f"v_mov_b32 v{Lr}, 0")
        L.append("s_waitcnt lgkmcnt(0)")
        for u in range(16): L.append(f"v_fma_f32 v{T+u}, v{T+u}, s48, -v{SC}")
        for u in range(16): L.append(f"v_exp_f32 v{T+u}, v{T+u}")
        for u in range(8): L.append(f"v_cvt_pk_bf16_f32 v{PK+u}, v{T+2*u}, v{T+2*u+1}")
        for u in range(8): L.append(f"v_dot2c_f32_bf16 v{Lr}, 0x3f803f80, v{PK+u}")
        L += wave_reduce(Lr, SC, "v_add_f32")
        L += ["s_lshl_b32 s35, s3, 2", "v_mov_b32 v3, s35", "v_mov_b32 v2, 0", "s_mov_b64 exec, 1",
              f"ds_write_b32 v3, v{M} offset:{L_ML}", f"ds_write_b32 v3, v{Lr} offset:{L_ML+16}", "s_mov_b64 exec, -1"]
        return L
    def emit(L):
        for x in L:
            if isinstance(x, tuple): vm.wait(x[1])
            elif x.endswith(":"): a.label(x[:-1])
            else: a(x)
    def rnd(islot, ten, L, extra0=()):
        L = list(L)
        for j in range(8):
            issue1(islot, j, ten)
            if extra0 and isinstance(extra0[0], tuple):
                for (pj, X) in extra0:
                    if pj == j: emit(X)
            elif j == 0: emit(extra0)
            budget = -(-len(L) // (8 - j))
            masked = False
            while L and (j == 7 or budget > 0 or masked):
                x = L[0]
                if isinstance(x, tuple) and j < 7 and x[1] in vm.q: break
                if x == "s_mov_b64 exec, 1": masked = True
                if x == "s_mov_b64 exec, -1": masked = False
                emit([L.pop(0)]); budget -= 1
    if pf:
        assert mapmode == 0
        a("s_mov_b32 s64, s10"); a("s_mov_b32 s65, s11")
        pr = [BUF + 4 * 32 + 4 * i for i in range(14)]
        n_ = [0]
        def pl(voff, srd, soff, im):
            vm.pace(pfw)
            a(f"buffer_load_dwordx4 {vr(pr[n_[0]])}, {voff}, {srd}, {soff} offen offset:{im} {pfl}")
            vm.issue(("P", n_[0])); n_[0] += 1
        for i in range(4):
            pl("v2", "s[64:67]", "s45", 0)
            if i < 3: a("s_add_u32 s45, s45, 8192")
        if pf >= 2:
            a("s_mov_b32 s68, s12"); a("s_mov_b32 s69, s13")
            pl("v2", "s[68:71]", "s84", 0)
            a("s_add_u32 s36, s6, s35")
            a("s_addc_u32 s37, s7, 0")
            if touch:
                a("s_add_u32 s40, s8, s35"); a("s_addc_u32 s41, s9, 0")
                a("s_mov_b64 exec, 1")
                a("s_cmp_lg_u32 s3, 0"); a("s_cbranch_scc1 L_t1")
                a("buffer_load_dword v240, v1, s[36:39], s44 offen nt")
                a.label("L_t1")
                if touch >= 2:
                    a("s_cmp_lg_u32 s3, 1"); a("s_cbranch_scc1 L_t2")
                    a("buffer_load_dword v240, v1, s[40:43], s44 offen nt")
                    a.label("L_t2")
                a("s_mov_b64 exec, -1")
            a("s_cmp_lt_u32 s62, 7")
            a("s_cselect_b32 s74, 0x1c0000, 0"); a("s_mov_b32 s75, 0x20000"); a("s_mov_b32 s72, s18"); a("s_mov_b32 s73, s19")
            a("s_mov_b32 s78, s74"); a("s_mov_b32 s79, 0x20000"); a("s_mov_b32 s76, s20"); a("s_mov_b32 s77, s21")
            a("s_mov_b32 s82, 0x1c0000"); a("s_mov_b32 s83, 0x20000"); a("s_mov_b32 s80, s22"); a("s_mov_b32 s81, s23")
            a("v_lshrrev_b32 v3, 5, v0"); a("v_mul_u32_u24 v3, 3584, v3"); a("v_and_b32 v4, 31, v0"); a("v_lshl_add_u32 v3, v4, 4, v3")
            a(f"s_mul_i32 s45, s63, {4*3584}"); a("s_lshl_b32 s57, s62, 9"); a("s_add_u32 s45, s45, s57")
            a("s_add_u32 s57, s45, 7168")
            for i in range(1, 4): pl("v2", "s[68:71]", "s84", i * 1024)
            for srd in ("s[72:75]", "s[76:79]"):
                pl("v3", srd, "s45", 0); pl("v3", srd, "s57", 0)
            a("s_lshl_b32 s45, s62, 18"); a("s_lshl_b32 s57, s63, 11"); a("s_add_u32 s45, s45, s57")
            for i in range(2): pl("v2", "s[80:83]", "s45", i * 1024)
    NSLOT = PRO + 1
    pA, pB, nb0, nbx, nbq, nbf, nbn, nbc = str(boost).split(",")
    pA, pB = pat(pA), pat(pB)
    init = [f"v_mov_b32 v{M}, 0xff800000"] + [f"v_mov_b32 v{O+j}, 0" for j in range(8)]
    init += ["s_add_u32 s40, s8, s35", "s_addc_u32 s41, s9, 0", f"s_mul_i32 s54, s3, {PL*8192}", f"s_add_u32 s54, s54, {L_KV}",
             "v_and_b32 v2, 15, v0", "v_lshlrev_b32 v2, 5, v2", "s_getreg_b32 s49, hwreg(HW_REG_XCC_ID)", "s_and_b32 s49, s49, 1",
             "s_lshl_b32 s35, s32, 5", "s_add_u32 s52, s28, s35", "s_addc_u32 s53, s29, 0",
             "s_mov_b32 s58, 0xaaaaaaaa", "s_mov_b32 s59, 0xaaaaaaaa", "s_mov_b32 s60, 0xcccccccc", "s_mov_b32 s61, 0xcccccccc",
             "v_lshlrev_b32 v3, 4, v0", "v_add_u32 v3, s54, v3"]
    init += [f"s_mov_b32 s55, {nb0}",
             "s_cmp_eq_u32 s49, 0", f"s_cselect_b32 s57, {nbx}, 0", "s_add_u32 s55, s55, s57",
             "s_lshr_b32 s57, s10, 8", "s_add_u32 s57, s57, s33", "s_and_b32 s57, s57, 3", "s_cmp_eq_u32 s57, 1",
             f"s_cselect_b32 s57, {nbq}, 0", "s_add_u32 s55, s55, s57",
             "s_lshr_b32 s57, s18, 7", "s_add_u32 s57, s57, s33", "s_and_b32 s57, s57, 3", "s_cmp_eq_u32 s57, 3",
             f"s_cselect_b32 s57, {nbf}, 0", "s_cmp_lt_u32 s33, 28", f"s_cselect_b32 s57, s57, {-int(nbn)}", "s_add_i32 s55, s55, s57",
             "s_getreg_b32 s57, hwreg(HW_REG_HW_ID, 8, 4)", f"s_mul_i32 s57, s57, {nbc}", "s_lshr_b32 s57, s57, 3", "s_add_i32 s55, s55, s57",
             "s_max_i32 s55, s55, 0", "s_lshr_b32 s56, s2, 3", "s_and_b32 s56, s56, 7"]
    if fb:
        init += ["s_and_b32 s57, s2, 7", "s_mul_i32 s57, s57, 5", "s_lshr_b32 s86, s2, 3", "s_add_u32 s57, s57, s86", "s_and_b32 s57, s57, 31",
                 "s_mul_i32 s57, s57, 4352", "s_add_u32 s57, s57, 0x90000", "s_add_u32 s86, s30, s57", "s_addc_u32 s87, s31, 0",
                 "s_load_dword s85, s[86:87], 0 glc"]
    for g in range(PRO):
        for j in range(8):
            issue1(g, j, "K")
            if g == 0 and j == 4: emit(init)
    for g in range(PL):
        for j in range(8): issueL(g, j)
    a("s_barrier")
    TQ = [32, 40, 240, 248]
    qrd = []
    for hw in range(4):
        a(f"ds_read_b128 {vr(TQ[hw])}, v2 offset:{L_QPART + hw*512}")
        a(f"ds_read_b128 {vr(TQ[hw]+4)}, v2 offset:{L_QPART + hw*512 + 16}")
    qrd.append("s_waitcnt lgkmcnt(0)")
    for j in range(0, 8, 2): qrd.append(f"v_pk_add_f32 {vr(32+j,2)}, {vr(32+j,2)}, {vr(40+j,2)}")
    for j in range(0, 8, 2): qrd.append(f"v_pk_add_f32 {vr(240+j,2)}, {vr(240+j,2)}, {vr(248+j,2)}")
    for j in range(0, 8, 2): qrd.append(f"v_pk_add_f32 {vr(32+j,2)}, {vr(32+j,2)}, {vr(240+j,2)}")
    for j in range(4): qrd.append(f"v_cvt_pk_bf16_f32 v{Q+j}, v{32+2*j}, v{33+2*j}")
    qrd += ["s_lshl_b32 s35, s3, 12", f"s_add_u32 s35, s35, {L_SC}", "v_lshl_add_u32 v2, v0, 3, s35"]
    loc = {g: g for g in range(PRO)}
    inlds = list(range(PRO, PRO + PL))
    stagedset = set()
    free = list(range(PRO, NSLOT))
    st_ = {"gi": PRO + PL, "gp": 0}
    def proc(g):
        sl = loc[g]
        if g < 32: L = procK(sl, g % 4, staged=(g in stagedset))
        else: L = (boundary() if g == 32 else []) + procV(sl, g % 4)
        free.append(sl)
        if inlds and len(free) >= 2:
            gl_ = inlds.pop(0); ls = free.pop()
            L.append(("wait", ("L", gl_ - PRO)))
            for j in range(8): L.append(f"ds_read_b128 {vr(reg(ls,j))}, v3 offset:{(gl_-PRO)*8192 + j*1024}")
            loc[gl_] = ls; stagedset.add(gl_)
        return L
    def uround(pre=(), extra0=(), lag=1):
        gi, gp = st_["gi"], st_["gp"]
        isl = free.pop(0); loc[gi] = isl
        if gi == 32 and not rot: a("s_mov_b32 s44, 0")
        n = max(min(2, gi - gp - (lag - 1)), 0)
        L = list(pre)
        for g in range(gp, gp + n): L += proc(g)
        rnd(isl, "K" if gi < 32 else "V", L, extra0)
        st_["gi"] += 1; st_["gp"] += n
    a("; ---- catch-up rounds (two K groups consumed per group issued)")
    uround(pre=qrd)
    while st_["gi"] - st_["gp"] > 1 or st_["gp"] % 4: uround()
    if fb:
        n2, cA, cB, t1, t2, fbr = fb.split(",")
        n2, t1, t2, fbr = int(n2), int(t1), int(t2), int(fbr); cA, cB = pat(cA), pat(cB)
    Wall = max(pat(winp) + pA + pB + ((cA + cB) if fb else []))
    nK = (28 - st_["gp"]) // 4
    NIT = nK + nV - (n2 if fb else 0)
    def loop(tag, n, ten, pats=None, den=None, hook=False):
        pats = pats or (pA, pB); den = den or NIT
        sa = loc[st_["gp"]]; sb = free[0]
        worst = [(sa, j) for j in range(8)][-Wall:]
        a(f"s_mov_b32 s45, {n}")
        a.label(f"L_top{tag}")
        a("s_add_u32 s56, s56, s55")
        a(f"s_cmp_ge_u32 s56, {den}")
        a(f"s_cbranch_scc1 L_B{tag}")
        for v, pp in (("A", pats[0]), ("B", pats[1])):
            a.label(f"L_{v}{tag}")
            if v == "B": a(f"s_sub_u32 s56, s56, {den}")
            assert 32 % len(pp) == 0
            setwin(pp); vm.q = list(worst)
            x, y = sa, sb
            for gq in range(4):
                ex = ()
                if hook:
                    cond = ["s_sub_u32 s57, s45, 1", "s_or_b32 s57, s57, s3", "s_cmp_lg_u32 s57, 0"]
                    if gq == fbr: ex = [(0, cond + [f"s_cbranch_scc1 L_h1{v}", "s_mov_b32 s84, 1", "s_atomic_add s84, s[86:87], 0 glc", f"L_h1{v}:"])]
                    if gq == 3: ex = [(1, cond + [f"s_cbranch_scc1 L_h2{v}", "s_waitcnt lgkmcnt(0)", "s_sub_u32 s84, s84, s85", "v_mov_b32 v3, s84",
                                              f"ds_write_b32 v2, v3 offset:{L_ML+36}", f"L_h2{v}:"]), (6, [f"ds_read_b32 v3, v2 offset:{L_ML+36}"])]
                rnd(y, ten, procK(x, gq) if ten == "K" else procV(x, gq), ex)
                x, y = y, x
            a("s_sub_u32 s45, s45, 1")
            a("s_cmp_lg_u32 s45, 0")
            a(f"s_cbranch_scc1 L_top{tag}")
            if v == "A": a(f"s_branch L_x{tag}")
        a.label(f"L_x{tag}")
        vm.q = list(worst)
        st_["gp"] += 4 * n; st_["gi"] += 4 * n
        loc[st_["gp"]] = sa
        setwin(pA)
    loop("K", nK, "K")
    while st_["gp"] < 36: uround()
    a("; ---- V loop")
    if fb:
        loop("V", nV - n2, "V", hook=True)
        a("s_waitcnt lgkmcnt(0)")
        a("v_readfirstlane_b32 s57, v3")
        a(f"s_cmp_ge_u32 s57, {t1}"); a("s_cselect_b32 s55, 1, 0")
        a(f"s_cmp_ge_u32 s57, {t2}"); a("s_cselect_b32 s55, 2, s55")
        a("s_mov_b32 s56, 1")
        loop("W", n2, "V", pats=(cA, cB), den=2)
    else:
        loop("V", nV, "V")
    tk = ["s_cmp_lg_u32 s3, 0", "s_cbranch_scc1 L_tk1",
          "s_mov_b32 s57, 0x1000000",
          "L_tk0:", "s_sub_u32 s57, s57, 1", "s_cbranch_scc1 L_tk3", f"ds_read_b32 v3, v2 offset:{L_CNT}", "s_waitcnt lgkmcnt(0)", "v_readfirstlane_b32 s50, v3",
          f"s_cmp_lt_u32 s50, {NH}", "s_cbranch_scc1 L_tk0", "L_tk3:",
          "s_mov_b32 s50, 1", "s_atomic_add s50, s[52:53], 0 glc", "L_tk1:"]
    setwin(pat(winf))
    wf = [int(x) for x in wfin.split("_")] if wfin else []
    while st_["gi"] < 64:
        left = 64 - st_["gi"]
        w_ = None
        if wf:
            w_ = wf[-left] if left <= len(wf) else None
            setwin([w_] if w_ else pA)
        uround(extra0=tk if st_["gi"] == 63 else (), lag=2 if (w_ and w_ > 8) else 1)
    while st_["gp"] < 63:
        emit(proc(st_["gp"])); st_["gp"] += 1
    Lp = procV(loc[63], 3)[:-7]
    emit(Lp[:17 * b2a])
    a("s_cmp_lg_u32 s3, 0")
    a("s_cbranch_scc1 L_tk2")
    a("s_waitcnt lgkmcnt(0)")
    a("v_mov_b32 v3, s50")
    a(f"ds_write_b32 v2, v3 offset:{L_ML+32}")
    a.label("L_tk2")
    a("s_waitcnt lgkmcnt(0)")
    a("s_barrier")
    a(f"ds_read_b128 {vr(240)}, v2 offset:{L_ML}")
    a(f"ds_read_b128 {vr(244)}, v2 offset:{L_ML+16}")
    a("s_lshl_b32 s35, s3, 9")
    a("v_lshl_add_u32 v3, v0, 3, s35")
    a("s_waitcnt lgkmcnt(1)")
    a("v_max3_f32 v248, v240, v241, v242")
    a("v_max_f32 v248, v248, v243")
    a("v_mul_f32 v248, s48, v248")
    for w in range(4): a(f"v_fma_f32 v{240+w}, v{240+w}, s48, -v248")
    a(f"v_fma_f32 v{AL}, v{M}, s48, -v248")
    for w in range(4): a(f"v_exp_f32 v{240+w}, v{240+w}")
    a(f"v_exp_f32 v{AL}, v{AL}")
    a("s_waitcnt lgkmcnt(0)")
    a(f"v_mul_f32 v{Lr}, v240, v244")
    for w in range(1, 4): a(f"v_fmac_f32 v{Lr}, v{240+w}, v{244+w}")
    a(f"v_rcp_f32 v{Lr}, v{Lr}")
    a(f"v_mul_f32 v{AL}, v{AL}, v{Lr}")
    emit(Lp[17 * b2a:])
    reduce8(O)
    a(f"v_pk_mul_f32 {vr(O,2)}, {vr(O,2)}, {vr(AL,2)} op_sel_hi:[1,0]")
    a(f"ds_write_b64 v3, {vr(O,2)} offset:{L_OPART}")
    a("s_waitcnt lgkmcnt(0)")
    a("s_barrier")
    a("s_endpgm")

    a.label("L_helper")
    vm = vmh
    if stamp == 3: a("s_memrealtime s[92:93]")
    a("s_mov_b32 s60, s22"); a("s_mov_b32 s61, s23"); a("s_mov_b32 s62, 0x1c0000"); a("s_mov_b32 s63, 0x20000")
    a("s_mov_b32 s64, s12"); a("s_mov_b32 s65, s13"); a("s_mov_b32 s66, 0x400000"); a("s_mov_b32 s67, 0x20000")
    if "o" in abl: a("s_mov_b32 s66, 0")
    a("s_mov_b32 s68, s16"); a("s_mov_b32 s69, s17"); a("s_mov_b32 s70, 1024"); a("s_mov_b32 s71, 0x20000")
    a("s_mov_b32 s72, s24"); a("s_mov_b32 s73, s25"); a("s_mov_b32 s74, 1024"); a("s_mov_b32 s75, 0x20000")
    a("s_mul_i32 s35, s32, 0x10100")
    a("s_add_u32 s76, s30, s35"); a("s_addc_u32 s77, s31, 0"); a("s_mov_b32 s78, 0x10100"); a("s_mov_b32 s79, 0x20000")
    a("s_lshl_b32 s35, s32, 10")
    a("s_add_u32 s80, s26, s35"); a("s_addc_u32 s81, s27, 0"); a("s_mov_b32 s82, 1024"); a("s_mov_b32 s83, 0x20000")
    a("s_mov_b32 s84, s28"); a("s_mov_b32 s85, s29"); a("s_mov_b32 s86, 256"); a("s_mov_b32 s87, 0x20000")
    a("s_lshl_b32 s35, s3, 8")
    a("s_lshl_b32 s50, s33, 16"); a("s_add_u32 s50, s50, s35")
    a("s_lshl_b32 s51, s33, 17"); a("s_add_u32 s51, s51, s35")
    a("v_lshlrev_b32 v7, 11, v3")
    a("v_lshl_add_u32 v7, v2, 4, v7")
    if cearly:
        a("s_lshl_b32 s49, s33, 11")
        a("s_lshl_b32 s35, s3, 9")
        a("s_add_u32 s49, s49, s35")
        for j in range(4): a(f"v_mov_b32 v{28+j}, -1")
        a("v_lshlrev_b32 v32, 4, v0")
        a("s_mov_b32 exec_hi, 0")
        a(f"buffer_store_dwordx4 v[28:31], v32, s[76:79], s49 offen {cflags}")
        vmh.issue("CLR")
        a("s_mov_b64 exec, -1")
    TAG = 27
    a("s_lshl_b32 s49, s33, 11")
    a("s_lshl_b32 s35, s3, 9")
    a("s_add_u32 s49, s49, s35")
    a("v_mov_b32 v28, 0x10000")
    a("v_lshlrev_b32 v29, 4, v0")
    if ep1:
        a("s_cmp_lg_u32 s3, 0")
        a("s_cbranch_scc1 L_noep")
        a("s_mov_b64 exec, 1")
        a(f"buffer_load_dword v{TAG}, v28, s[76:79], 0 offen sc1")
        a("s_mov_b64 exec, -1")
        a.label("L_noep")
    else:
        a(f"buffer_load_dword v{TAG}, v28, s[76:79], 0 offen sc1"); vm.issue("ST")
    a("s_mov_b32 exec_hi, 0")
    a(f"buffer_load_dwordx4 {vr(WO)}, v29, s[76:79], s49 offen sc1"); vm.issue("ST")
    a("s_mov_b64 exec, -1")
    for j in range(8): a(f"v_mov_b32 v{ACC+j}, 0")
    a(f"v_mov_b32 v{CNTA}, {L_CNT}")
    a(f"ds_write_b32 v{CNTA}, v{ACC}")
    if fb:
        a("v_mov_b32 v30, 4")
        a(f"ds_write_b32 v{ACC}, v30 offset:{L_ML+36}")
    if ctl:
        a("v_mov_b32 v28, 16"); a("v_mov_b32 v29, 16")
        a(f"ds_write_b64 v{ACC}, v[28:29] offset:{L_ML+32}")
    a("v_lshlrev_b32 v4, 5, v2")
    a("v_lshl_add_u32 v4, v3, 3, v4")
    a("s_lshl_b32 s35, s3, 9")
    a("v_add_u32 v1, s35, v4")

    def perm_pair(k, dst):
        r0 = RING + (k % NR) * 4; r1 = RING + ((k + 1) % NR) * 4
        if roll: advance(k + 1)
        else: vm.wait(("W", k + 1))
        for c in range(4):
            a(f"v_perm_b32 v{dst+2*c}, v{r1+c}, v{r0+c}, s46")
            a(f"v_perm_b32 v{dst+2*c+1}, v{r1+c}, v{r0+c}, s47")
        st["consumed"] = k + 2
    def dots(src, t, p):
        for j in range(8): a(f"v_dot2c_f32_bf16_dpp v{ACC+j}, v{src}, v{t+j} row_newbcast:{p} {DPPM}")
    a("; ---- q partials")
    for p in range(16):
        k = 2 * p
        t = TP + (p % 2) * 8
        perm_pair(k, t)
        if stamp == 3 and p == 0: a("s_memrealtime s[94:95]")
        if stamp == 3 and p == 8: a("s_memrealtime s[96:97]")
        if not roll: issue_until(int(Dq) if k + 2 + int(Dq) <= 32 else int(Dh))
        if p == 0: vm.wait("XQ")
        dots(XP, t, p)
    reduce8(ACC)
    a(f"ds_write_b64 v1, {vr(ACC,2)} offset:{L_QPART}")
    if ep1:
        vm.wait("ST")
        a("s_cmp_lg_u32 s3, 0")
        a("s_cbranch_scc1 L_noep2")
        a("s_mov_b64 exec, 1")
        a(f"ds_write_b32 v{CNTA}, v{TAG} offset:{L_FLAG - L_CNT}")
        a("s_mov_b64 exec, -1")
        a.label("L_noep2")
    if stamp == 3: a("s_memrealtime s[98:99]")
    a("s_waitcnt lgkmcnt(0)")
    if not pure: a("s_barrier")
    if (stamp and stamp != 7) or dbl: a("s_memrealtime s[90:91]")
    if ending in ("e2", "e3"):
        z = WO
        vm.wait("ST")
        if ep1:
            a(f"ds_read_b32 v{TAG}, v{CNTA} offset:{L_FLAG - L_CNT}")
            a("s_waitcnt lgkmcnt(0)")
        a(f"v_add_u32 v{TAG}, 1, v{TAG}")
        a(f"v_readfirstlane_b32 s53, v{TAG}")
        a(f"v_and_b32 v{TAG}, 0xff, v{TAG}")
        a(f"v_xor_b32 v28, v{z}, v{TAG}")
        for j in (1, 2, 3): a(f"v_bitop3_b32 v28, v28, v{z+j}, v{TAG} bitop3:0xf6")
        a("v_and_b32 v28, 0xff, v28")
        a("s_mov_b32 exec_hi, 0")
        a("v_cmp_eq_u32 vcc, 0, v28")
        a("s_cbranch_vccz L_nostale")
        for j in range(4): a(f"v_xor_b32 v{z+j}, 0xff, v{TAG}")
        a(f"buffer_store_dwordx4 {vr(z)}, v29, s[76:79], s49 offen sc1")
        a("s_waitcnt vmcnt(0)")
        a.label("L_nostale")
        a("s_mov_b64 exec, -1")
        a("s_mov_b32 s52, 0xffffff00")
    a("; ---- Wo slice -> registers (row pairs interleaved)")
    for p in range(16):
        perm_pair(32 + 2 * p, WO + 8 * p)
        if not roll: issue_until(int(Dh))
    GX, GW, GR = RING, RING + 4, RING + 8
    t = RING + 16
    a("v_lshlrev_b32 v5, 4, v0")
    a(f"buffer_load_dwordx4 {vr(GX)}, v5, s[36:39], 0 offen")
    a(f"buffer_load_dwordx4 {vr(GW)}, v5, s[72:75], 0 offen")
    a(f"buffer_load_dwordx4 {vr(GR)}, v5, s[68:71], 0 offen")
    a("v_lshrrev_b32 v6, 1, v4")
    a("s_lshl_b32 s35, s3, 8")
    a(f"buffer_load_dword v{XR}, v6, s[36:39], s35 offen")
    if ending == "e1":
        for j in range(4): a(f"v_mov_b32 v{t+j}, -1")
        a("s_mov_b32 exec_hi, 0")
        if "c" not in abl and not cearly: a(f"buffer_store_dwordx4 {vr(t)}, v5, s[76:79], s49 offen {cflags}")
        a("s_mov_b64 exec, -1")
    a("v_cmp_gt_u32 vcc, 8, v2")
    a("v_mov_b32 v28, s20"); a("v_mov_b32 v29, s18")
    a(f"v_cndmask_b32 v{GA}, v28, v29, vcc")
    a("v_mov_b32 v28, s21"); a("v_mov_b32 v29, s19")
    a(f"v_cndmask_b32 v{GA+1}, v28, v29, vcc")
    a(f"s_mul_i32 s35, s3, {HW_ROWS*3584}")
    a("s_lshl_b32 s45, s33, 7")
    a("s_add_u32 s35, s35, s45")
    a(f"v_mul_u32_u24 v28, {RG_ROWS*3584}, v3")
    a("v_and_b32 v29, 7, v2")
    a("v_lshl_add_u32 v28, v29, 4, v28")
    a("v_add_u32 v28, s35, v28")
    a(f"v_add_co_u32 v{GA}, vcc, v28, v{GA}")
    a(f"v_addc_co_u32 v{GA+1}, vcc, 0, v{GA+1}, vcc")
    for j in range(8): a(f"v_mov_b32 v{ACC+j}, 0")
    vm.waitall()
    a("; ---- gates g, r")
    for c in range(4):
        a(f"v_lshlrev_b32 v{t}, 16, v{GX+c}")
        a(f"v_and_b32 v{t+1}, 0xffff0000, v{GX+c}")
        a(f"v_lshlrev_b32 v{t+2}, 16, v{GW+c}")
        a(f"v_and_b32 v{t+3}, 0xffff0000, v{GW+c}")
        a(f"v_mul_f32 v{t}, v{t}, v{t+2}")
        a(f"v_mul_f32 v{t+1}, v{t+1}, v{t+3}")
        a(f"v_cvt_pk_bf16_f32 v{t+4+c}, v{t}, v{t+1}")
    ZG, ZR = t + 8, t + 9
    a(f"v_mov_b32 v{ZG}, 0"); a(f"v_mov_b32 v{ZR}, 0")
    for c in range(4):
        a(f"v_dot2c_f32_bf16 v{ZG}, 0x3f803f80, v{t+4+c}")
        a(f"v_dot2c_f32_bf16 v{ZR}, v{GX+c}, v{GR+c}")
    for dpp in ("quad_perm:[1,0,3,2]", "quad_perm:[2,3,0,1]", "row_half_mirror", "row_mirror"):
        for z in (ZG, ZR): a(f"v_add_f32_dpp v{z}, v{z}, v{z} {dpp} {DPPM}")
    for sw in ("v_permlane32_swap_b32", "v_permlane16_swap_b32"):
        for z in (ZG, ZR): a(f"v_mov_b32 v{z+2}, v{z}")
        for z in (ZG, ZR): a(f"{sw} v{z}, v{z+2}")
        for z in (ZG, ZR): a(f"v_add_f32 v{z}, v{z}, v{z+2}")
    def rnd2(r0, r1, tmp):
        a(f"v_cvt_pk_bf16_f32 v{tmp}, v{r0}, v{r1}")
        a(f"v_lshlrev_b32 v{r0}, 16, v{tmp}")
        a(f"v_and_b32 v{r1}, 0xffff0000, v{tmp}")
    def sigmoid(dst, src):
        a(f"v_mul_f32 v{dst}, {f2u(-LOG2E):#x}, v{src}")
        a(f"v_exp_f32 v{dst}, v{dst}")
        a(f"v_add_f32 v{dst}, 1.0, v{dst}")
        a(f"v_rcp_f32 v{dst}, v{dst}")
    rnd2(ZG, ZR, t)
    sigmoid(ZG, ZG); sigmoid(ZR, ZR)
    rnd2(ZG, ZR, t)
    a(f"v_mov_b32 v{G_}, v{ZG}")
    a(f"v_sub_f32 v{t+1}, 1.0, v{ZG}")
    a(f"v_cvt_pk_bf16_f32 v{t}, v{t+1}, v{t+1}")
    a(f"v_lshlrev_b32 v{t+1}, 16, v{t}")
    a(f"v_mul_f32 v{GR_}, v{t+1}, v{ZR}")
    a("s_cmp_eq_u32 s33, 28")
    a("s_cselect_b32 s35, 1.0, 0")
    a(f"v_mul_f32 v{t+1}, s35, v{t+1}")
    a(f"v_lshlrev_b32 v{YB}, 16, v{XR}")
    a(f"v_and_b32 v{YB+1}, 0xffff0000, v{XR}")
    a(f"v_mul_f32 v{YB}, v{YB}, v{t+1}")
    a(f"v_mul_f32 v{YB+1}, v{YB+1}, v{t+1}")
    a("v_mov_b32 v28, 1")
    a(f"s_cmp_lt_u32 s33, {0 if 'f' in abl else 28}")
    a("s_cbranch_scc1 L_ffn")
    a("s_mov_b64 exec, 1")
    a(f"ds_add_u32 v{CNTA}, v28")
    a("s_mov_b64 exec, -1")
    a("s_branch L_noffn")
    a.label("L_ffn")
    st["limit"] = len(stream)
    if not roll: issue_until(int(Dh))
    for p in range(16):
        k = 64 + 2 * p
        tt = TP + (p % 2) * 8
        perm_pair(k, tt)
        if not roll: issue_until(int(Dh))
        dots(XP, tt, p)
    reduce8(ACC)
    a(f"ds_write_b64 v1, {vr(ACC,2)} offset:{L_FPART}")
    a("s_waitcnt lgkmcnt(0)")
    a("s_mov_b64 exec, 1")
    a(f"ds_add_u32 v{CNTA}, v28")
    a("s_mov_b64 exec, -1")
    a("s_mov_b32 s59, 0x400000")
    a.label("L_fwait")
    a(f"ds_read_b32 v29, v{CNTA}")
    a("s_waitcnt lgkmcnt(0)")
    a("v_readfirstlane_b32 s35, v29")
    a(f"s_cmp_ge_u32 s35, {0 if pure else NH}")
    a("s_cbranch_scc1 L_fgo")
    a("s_sleep 8")
    a("s_sub_u32 s59, s59, 1")
    a("s_cbranch_scc0 L_fwait")
    a.label("L_fgo")
    a("v_and_b32 v5, 0xff, v4")
    t = TP
    for hw in range(4):
        a(f"ds_read_b64 {vr(t+4*hw,2)}, v5 offset:{L_FPART + hw*512}")
        a(f"ds_read_b64 {vr(t+4*hw+2,2)}, v5 offset:{L_FPART + hw*512 + 256}")
    for j in range(8): a(f"v_mov_b32 v{ACC+j}, 0")
    a("s_waitcnt lgkmcnt(0)")
    for hw in (1, 2, 3):
        a(f"v_pk_add_f32 {vr(t,2)}, {vr(t,2)}, {vr(t+4*hw,2)}")
        a(f"v_pk_add_f32 {vr(t+2,2)}, {vr(t+2,2)}, {vr(t+4*hw+2,2)}")
    rnd2(t, t + 1, t + 4)
    rnd2(t + 2, t + 3, t + 5)
    sigmoid(t + 6, t); sigmoid(t + 7, t + 1)
    a(f"v_mul_f32 v{t}, v{t}, v{t+6}")
    a(f"v_mul_f32 v{t+1}, v{t+1}, v{t+7}")
    rnd2(t, t + 1, t + 4)
    a(f"v_mul_f32 v{t}, v{t}, v{t+2}")
    a(f"v_mul_f32 v{t+1}, v{t+1}, v{t+3}")
    a(f"v_cvt_pk_bf16_f32 v{HP}, v{t}, v{t+1}")
    for p in range(8):
        k = 96 + 2 * p
        tt = TP + (p % 2) * 8
        perm_pair(k, tt)
        if not roll: issue_until(int(Dh))
        dots(HP, tt, p)
    reduce8(ACC)
    a(f"v_fmac_f32 v{YB}, v{ACC}, v{GR_}")
    a(f"v_fmac_f32 v{YB+1}, v{ACC+1}, v{GR_}")
    for j in range(8): a(f"v_mov_b32 v{ACC+j}, 0")
    a.label("L_noffn")
    assert not vm.q
    a("v_lshlrev_b32 v5, 3, v0")
    a("v_mov_b32 v6, 0")
    a("v_lshrrev_b32 v7, 1, v4")
    a("s_lshl_b32 s51, s3, 8")
    GO = 248 - 16 + 16
    if ending == "e3":
        D = ACC + 4
        CK, GOF, OOF, CNT = 16, 28, 29, 30
        NL = 16 // R
        GB = 3 if R == 4 else 2
        T0 = 32 - R
        a(f"v_lshrrev_b32 v252, {GB}, v0")
        a(f"v_and_b32 v253, {(1 << GB) - 1}, v0")
        a(f"v_lshlrev_b32 v{GOF}, 11, v252")
        a(f"v_lshl_add_u32 v{GOF}, v253, 4, v{GOF}")
        a(f"s_lshl_b32 s35, s3, {GB + 4}")
        a(f"v_add_u32 v{GOF}, s35, v{GOF}")
        if R == 4:
            a("s_and_b32 s35, s3, 1"); a("s_lshl_b32 s35, s35, 7")
            a("s_lshr_b32 s45, s3, 1"); a("s_lshl_b32 s45, s45, 2"); a("s_add_u32 s35, s35, s45")
        else:
            a("s_lshl_b32 s35, s3, 6")
        a(f"v_lshl_add_u32 v{OOF}, v253, 4, s35")
        a("v_lshrrev_b32 v252, 5, v0")
        a(f"v_lshl_add_u32 v{OOF}, v252, 3, v{OOF}")
        a("s_lshl_b32 s54, s32, 5")
        a("v_lshlrev_b32 v253, 4, v0")
        a("v_mov_b32 v254, 0x10000")
        a("v_mov_b32 v252, s53")
        a("s_waitcnt lgkmcnt(0)")
        if dry:
            a("s_mov_b32 s58, 1")
            a("s_mov_b64 s[56:57], 0")
            a("v_cmp_ne_u32 vcc, v6, v6")
            a("s_mov_b64 exec, 0")
            a("s_branch L_nb")
        a.label("L_real")
        if dry:
            a("s_mov_b32 s58, 0")
            a("s_mov_b64 s[56:57], -1")
            a("s_mov_b64 exec, -1")
            for j in range(8): a(f"v_mov_b32 v{ACC+j}, 0")
        if stamp in (1, 2, 6): a("s_memrealtime s[92:93]")
        if stamp == 5: a("s_mov_b32 s92, 0")
        a("s_waitcnt vmcnt(0) lgkmcnt(0)")
        a("s_barrier")
        a(f"ds_read_b32 v255, v6 offset:{L_ML+32}")
        a("s_waitcnt lgkmcnt(0)")
        a("v_readfirstlane_b32 s50, v255")
        a("s_andn2_b32 s55, s50, 31")
        a("s_and_b32 s50, s50, 31")
        a(f"s_cmp_lt_u32 s50, {T0}")
        a("s_cbranch_scc1 L_nog")
        a(f"buffer_load_dword v{CNT}, v6, s[84:87], s54 offen sc1")
        a(f"s_sub_u32 s35, s50, {T0}")
        if R == 4:
            a("s_lshl_b32 s51, s35, 8")
            a("s_lshl_b32 s12, s35, 9")
        else:
            a("s_lshr_b32 s51, s35, 1"); a("s_lshl_b32 s51, s51, 8")
            a("s_and_b32 s45, s35, 1"); a("s_lshl_b32 s45, s45, 2"); a("s_add_u32 s51, s51, s45")
            a("s_lshl_b32 s12, s35, 8")
        for k in range(1, NL): a(f"s_add_u32 s{12+k}, s12, {k * 0x10000 // NL}")
        a.label("L_nog")
        a("s_barrier")
        a.label("L_nb")
        if stamp in (1, 2, 5, 6): a("s_memrealtime s[94:95]")
        to = TP
        for w in range(NS): a(f"ds_read_b64 {vr(to+2*w,2)}, v5 offset:{L_OPART + w*512}")
        a("s_waitcnt lgkmcnt(0)" if stamp else "s_waitcnt lgkmcnt(2)")
        a(f"v_pk_add_f32 {vr(to,2)}, {vr(to,2)}, {vr(to+2,2)}")
        a("s_waitcnt lgkmcnt(0)")
        a(f"v_pk_add_f32 {vr(to+4,2)}, {vr(to+4,2)}, {vr(to+6,2)}")
        a(f"v_pk_add_f32 {vr(to,2)}, {vr(to,2)}, {vr(to+4,2)}")
        a(f"v_cvt_pk_bf16_f32 v{HP}, v{to}, v{to+1}")
        for p in range(16): dots(HP, WO + 8 * p, p)
        reduce8(ACC)
        a(f"v_fmac_f32 v{YB}, v{ACC}, v{G_}")
        a(f"v_fmac_f32 v{YB+1}, v{ACC+1}, v{G_}")
        if stamp in (1, 2, 5, 6): a("s_memrealtime s[96:97]"); a("s_memrealtime s[98:99]")
        a(f"v_and_or_b32 v{D}, v{YB}, s52, v{TAG}")
        a(f"v_and_or_b32 v{D+1}, v{YB+1}, s52, v{TAG}")
        a(f"v_and_or_b32 v{D+2}, v{YB}, s52, v{TAG}")
        a(f"v_and_or_b32 v{D+3}, v{YB+1}, s52, v{TAG}")
        a(f"v_permlane32_swap_b32 v{D}, v{D+2}")
        a(f"v_permlane32_swap_b32 v{D+1}, v{D+3}")
        a("s_mov_b32 exec_hi, 0")
        if dry:
            a("s_cmp_eq_u32 s58, 1")
            a("s_cbranch_scc1 L_p0w")
        a(f"buffer_store_dwordx4 {vr(D)}, v253, s[76:79], s49 offen {stf}")
        a(f"s_cmp_lt_u32 s50, {T0}")
        a("s_cbranch_scc1 L_hend")
        a("s_mov_b64 exec, -1")
        a("s_mov_b32 s59, 0x400000")
        a("s_waitcnt vmcnt(1)")
        a.label("L_cnt")
        a(f"v_readfirstlane_b32 s35, v{CNT}")
        a("s_sub_u32 s35, s35, s55")
        a("s_cmp_ge_u32 s35, 32")
        a("s_cbranch_scc1 L_go")
        a(f"buffer_load_dword v{CNT}, v6, s[84:87], s54 offen sc1")
        a("s_waitcnt vmcnt(0)")
        a("s_sub_u32 s59, s59, 1")
        a("s_cbranch_scc0 L_cnt")
        a("s_branch L_fail")
        a.label("L_go")
        def gather(st_i):
            for k in range(NL): a(f"buffer_load_dwordx4 {vr(RING+16*st_i+4*k)}, v{GOF}, s[76:79], s{12+k} offen {gaf}")
        for i in range(nset - 1):
            gather(i)
            if pgap: a(f"s_nop {pgap}")
        a.label("L_poll")
        for i in range(nset):
            gather((i + nset - 1) % nset)
            if i == 0: a.label("L_p0w")
            b = RING + 16 * i
            if stamp == 5: a("s_add_u32 s92, s92, 1")
            if R == 8:
                a(f"s_waitcnt vmcnt({2*(nset-1)})")
                a(f"v_xor_b32 v{CK}, v{b}, v{TAG}")
                a(f"v_xor_b32 v{CK+1}, v{b+1}, v{TAG}")
                for j in range(2, 8): a(f"v_bitop3_b32 v{CK+j%2}, v{CK+j%2}, v{b+j}, v{TAG} bitop3:0xf6")
                a(f"v_pk_add_f32 {vr(ACC,2)}, {vr(b,2)}, {vr(b+4,2)}")
                a(f"v_or_b32 v{CK}, v{CK}, v{CK+1}")
                a(f"v_pk_add_f32 {vr(ACC+2,2)}, {vr(b+2,2)}, {vr(b+6,2)}")
                a(f"v_cmp_ne_u32_sdwa vcc, v{CK}, v6 src0_sel:BYTE_0 src1_sel:DWORD")
            else:
                a(f"s_waitcnt vmcnt({4*(nset-1)+2})")
                a(f"v_xor_b32 v{CK}, v{b}, v{TAG}")
                a(f"v_xor_b32 v{CK+1}, v{b+1}, v{TAG}")
                for j in range(2, 8): a(f"v_bitop3_b32 v{CK+j%2}, v{CK+j%2}, v{b+j}, v{TAG} bitop3:0xf6")
                a(f"v_pk_add_f32 {vr(ACC,2)}, {vr(b,2)}, {vr(b+4,2)}")
                a(f"v_pk_add_f32 {vr(ACC+2,2)}, {vr(b+2,2)}, {vr(b+6,2)}")
                a(f"s_waitcnt vmcnt({4*(nset-1)})")
                for j in range(8, 16): a(f"v_bitop3_b32 v{CK+j%2}, v{CK+j%2}, v{b+j}, v{TAG} bitop3:0xf6")
                a(f"v_pk_add_f32 {vr(ACC+4,2)}, {vr(b+8,2)}, {vr(b+12,2)}")
                a(f"v_or_b32 v{CK}, v{CK}, v{CK+1}")
                a(f"v_pk_add_f32 {vr(ACC+6,2)}, {vr(b+10,2)}, {vr(b+14,2)}")
                a(f"v_cmp_ne_u32_sdwa vcc, v{CK}, v6 src0_sel:BYTE_0 src1_sel:DWORD")
                a(f"v_pk_add_f32 {vr(ACC,2)}, {vr(ACC,2)}, {vr(ACC+4,2)}")
                a(f"v_pk_add_f32 {vr(ACC+2,2)}, {vr(ACC+2,2)}, {vr(ACC+6,2)}")
            a("s_cbranch_vccz L_ok")
            if dry: a("s_cbranch_execz L_ok")
        a("s_sub_u32 s59, s59, 1")
        a("s_cbranch_scc0 L_poll")
        a.label("L_fail")
        if stamp == 7:
            a("v_mov_b32 v8, 0x4000"); a("v_mov_b32 v9, s50")
            a("s_mov_b64 exec, 1")
            a("buffer_atomic_add v8, v6, s[84:87], 0 offen offset:4 sc1")
        a("s_branch L_hend")
        a.label("L_ok")
        a("s_nop 0")
        if stamp == 5: a("s_waitcnt lgkmcnt(0)"); a("s_memrealtime s[98:99]")
        a(f"v_permlane32_swap_b32 v{ACC}, v{ACC+2}")
        a(f"v_permlane32_swap_b32 v{ACC+1}, v{ACC+3}")
        a(f"v_pk_add_f32 {vr(ACC,2)}, {vr(ACC,2)}, {vr(ACC+2,2)}")
        a(f"v_mov_b32 v{ACC+2}, v{ACC}")
        a(f"v_mov_b32 v{ACC+3}, v{ACC+1}")
        a(f"v_permlane16_swap_b32 v{ACC}, v{ACC+2}")
        a(f"v_permlane16_swap_b32 v{ACC+1}, v{ACC+3}")
        a(f"v_pk_add_f32 {vr(ACC,2)}, {vr(ACC,2)}, {vr(ACC+2,2)}")
        a(f"v_add_f32_dpp v{ACC}, v{ACC}, v{ACC} row_ror:8 {DPPM}")
        a(f"v_add_f32_dpp v{ACC+1}, v{ACC+1}, v{ACC+1} row_ror:8 {DPPM}")
        if R == 8:
            a(f"v_add_f32_dpp v{ACC}, v{ACC}, v{ACC} row_ror:4 {DPPM}")
            a(f"v_add_f32_dpp v{ACC+1}, v{ACC+1}, v{ACC+1} row_ror:4 {DPPM}")
        a(f"v_cvt_pk_bf16_f32 v{ACC}, v{ACC}, v{ACC+1}")
        if dry:
            a("s_cmp_eq_u32 s58, 1")
            a("s_cbranch_scc1 L_real")
        a(f"s_mov_b32 exec_lo, {(1 << (1 << GB)) - 1}")
        a(f"s_mov_b32 exec_hi, {(1 << (1 << GB)) - 1}")
        a(f"buffer_store_dword v{ACC}, v{OOF}, s[80:83], s51 offen {oflags}")
        a("s_cmp_lg_u32 s50, 31")
        a("s_cbranch_scc1 L_hend")
        a("s_cmp_lg_u32 s3, 0")
        a("s_cbranch_scc1 L_hend")
        a("s_mov_b64 exec, 1")
        a(f"buffer_store_dword v252, v254, s[76:79], 0 offen {oflags}")
    else:
        if stamp in (1, 2, 6): a("s_memrealtime s[92:93]")
        a("s_waitcnt lgkmcnt(0)")
        a("s_barrier")
        if stamp in (1, 2, 5, 6): a("s_memrealtime s[94:95]")
        tm, tl, to = TP, TP + 4, TP + 8
        if ending != "e0": a(f"ds_read_b32 v255, v6 offset:{L_ML+32}")
        a(f"ds_read_b128 {vr(tm)}, v6 offset:{L_ML}")
        a(f"ds_read_b128 {vr(tl)}, v6 offset:{L_ML+16}")
        for w in range(NS): a(f"ds_read_b64 {vr(to+2*w,2)}, v5 offset:{L_OPART + w*512}")
        def gather(base):
            for k in range(16): a(f"buffer_load_dwordx4 {vr(base+4*k)}, v{goff[k]}, s[76:79], 0 offen sc1")
        if ending != "e0":
            a("s_waitcnt lgkmcnt(0)" if stamp else "s_waitcnt lgkmcnt(6)")
            a("v_readfirstlane_b32 s50, v255")
            a("s_cmp_lg_u32 s50, 31")
            a("s_cbranch_scc1 L_nog")
            gather(RING)
            a.label("L_nog")
        a("s_waitcnt lgkmcnt(0)" if stamp else "s_waitcnt lgkmcnt(5)")
        MX = 16
        a(f"v_max3_f32 v{MX}, v{tm}, v{tm+1}, v{tm+2}")
        a(f"v_max_f32 v{MX}, v{MX}, v{tm+3}")
        a(f"v_mul_f32 v{MX}, s48, v{MX}")
        for w in range(NS): a(f"v_fma_f32 v{tm+w}, v{tm+w}, s48, -v{MX}")
        for w in range(NS): a(f"v_exp_f32 v{tm+w}, v{tm+w}")
        a("s_waitcnt lgkmcnt(0)")
        a(f"v_mul_f32 v{MX+1}, v{tm}, v{tl}")
        a(f"v_mul_f32 v{MX+2}, v{tm}, v{to}")
        a(f"v_mul_f32 v{MX+3}, v{tm}, v{to+1}")
        for w in range(1, NS):
            a(f"v_fmac_f32 v{MX+1}, v{tm+w}, v{tl+w}")
            a(f"v_fmac_f32 v{MX+2}, v{tm+w}, v{to+2*w}")
            a(f"v_fmac_f32 v{MX+3}, v{tm+w}, v{to+2*w+1}")
        a(f"v_rcp_f32 v{MX+1}, v{MX+1}")
        a(f"v_mul_f32 v{MX+2}, v{MX+2}, v{MX+1}")
        a(f"v_mul_f32 v{MX+3}, v{MX+3}, v{MX+1}")
        a(f"v_cvt_pk_bf16_f32 v{HP}, v{MX+2}, v{MX+3}")
        for p in range(16): dots(HP, WO + 8 * p, p)
        reduce8(ACC)
        a(f"v_fmac_f32 v{YB}, v{ACC}, v{G_}")
        a(f"v_fmac_f32 v{YB+1}, v{ACC+1}, v{G_}")
        D = ACC + 4
        def pack_store():
            if ending == "e2":
                a(f"v_and_or_b32 v{D}, v{YB}, s52, v{TAG}")
                a(f"v_and_or_b32 v{D+1}, v{YB+1}, s52, v{TAG}")
            else:
                a(f"v_min_u32 v{D}, -2, v{YB}")
                a(f"v_min_u32 v{D+1}, -2, v{YB+1}")
            a(f"v_mov_b32 v{D+2}, v{D}")
            a(f"v_mov_b32 v{D+3}, v{D+1}")
            a("v_lshlrev_b32 v5, 4, v0")
            a(f"v_permlane32_swap_b32 v{D}, v{D+2}")
            a(f"v_permlane32_swap_b32 v{D+1}, v{D+3}")
            a("s_mov_b32 exec_hi, 0")
            if "s" not in abl: a(f"buffer_store_dwordx4 {vr(D)}, v5, s[76:79], s49 offen sc1")
            a("s_mov_b64 exec, -1")
        def sum16(base, dst, waits):
            CK = ACC + 4
            if ending == "e2":
                a(f"v_mov_b32 v{CK}, 0")
                a(f"s_waitcnt vmcnt({waits + 15})")
                a("s_mov_b32 exec_lo, 0")
                for j in range(4): a(f"v_bitop3_b32 v{CK}, v{CK}, v{base+j}, v{TAG} bitop3:0xf6")
                a("s_mov_b64 exec, -1")
            for k in range(1, 16):
                if waits is not None: a(f"s_waitcnt vmcnt({waits + 15 - k})")
                s0 = base if k == 1 else dst
                if ending == "e2":
                    for j in range(4): a(f"v_bitop3_b32 v{CK}, v{CK}, v{base+4*k+j}, v{TAG} bitop3:0xf6")
                a(f"v_pk_add_f32 {vr(dst,2)}, {vr(s0,2)}, {vr(base+4*k,2)}")
                a(f"v_pk_add_f32 {vr(dst+2,2)}, {vr(s0+2,2)}, {vr(base+4*k+2,2)}")
        if ending == "e0":
            pack_store()
            if stamp in (1, 2, 6): a("s_memrealtime s[96:97]")
            a("s_waitcnt vmcnt(0)")
            a("s_barrier")
            a("s_cmp_lg_u32 s3, 0")
            a("s_cbranch_scc1 L_watom")
            a("s_lshl_b32 s35, s32, 5")
            a("v_mov_b32 v28, 1")
            a("s_mov_b64 exec, 1")
            a("buffer_atomic_add v28, v6, s[84:87], s35 offen sc0 sc1")
            a("s_waitcnt vmcnt(0)")
            a(f"ds_write_b32 v6, v28 offset:{L_FLAG}")
            a("s_waitcnt lgkmcnt(0)")
            a("s_mov_b64 exec, -1")
            a.label("L_watom")
            a("s_barrier")
            a(f"ds_read_b32 v28, v6 offset:{L_FLAG}")
            a("s_waitcnt lgkmcnt(0)")
            a("v_readfirstlane_b32 s35, v28")
            a("s_cmp_lg_u32 s35, 31")
            if stamp in (1, 2, 6): a("s_memrealtime s[98:99]")
            a("s_cbranch_scc1 L_hend")
            a("v_and_b32 v28, 31, v0")
            a("v_lshlrev_b32 v28, 4, v28")
            a("v_lshrrev_b32 v29, 5, v0")
            a("v_lshl_add_u32 v28, v29, 11, v28")
            a("s_lshl_b32 s35, s3, 9")
            for k in range(16):
                a(f"buffer_load_dwordx4 {vr(WO+4*k)}, v28, s[76:79], s35 offen sc1")
                a("s_add_u32 s35, s35, 4096")
            sum16(WO, ACC, 0)
            a(f"v_permlane32_swap_b32 v{ACC}, v{ACC+2}")
            a(f"v_permlane32_swap_b32 v{ACC+1}, v{ACC+3}")
            a(f"v_pk_add_f32 {vr(ACC,2)}, {vr(ACC,2)}, {vr(ACC+2,2)}")
            a(f"v_cvt_pk_bf16_f32 v{ACC}, v{ACC}, v{ACC+1}")
            a(f"buffer_store_dword v{ACC}, v7, s[80:83], s51 offen {oflags}")
        else:
            if stamp in (1, 2, 5, 6): a("s_memrealtime s[96:97]"); a("s_memrealtime s[98:99]")
            if stamp == 5: a("s_mov_b32 s92, 0")
            a("s_cmp_eq_u32 s50, 31")
            a("s_cbranch_scc1 L_red")
            pack_store()
            a("s_branch L_hend")
            a.label("L_red")
            SB, SC = WO, WO + 64
            def check(base, ok, tag):
                if stamp == 5: a("s_add_u32 s92, s92, 1")
                if ending == "e2":
                    a(f"v_and_b32 v{ACC+4}, 0xff, v{ACC+4}")
                    a(f"v_cmp_ne_u32 vcc, 0, v{ACC+4}")
                    a(f"s_cbranch_vccz {ok}")
                    return
                a(f"v_add_f32 v{ACC+4}, v{ACC}, v{ACC+1}")
                a(f"v_add_f32 v{ACC+5}, v{ACC+2}, v{ACC+3}")
                a(f"v_cmp_u_f32 vcc, v{ACC+4}, v{ACC+5}")
                a(f"s_cbranch_vccz {ok}")
                a(f"v_max_u32 v{ACC+4}, v{base}, v{base+1}")
                for k in range(2, 64, 2): a(f"v_max3_u32 v{ACC+4}, v{base+k}, v{base+k+1}, v{ACC+4}")
                a(f"v_cmp_eq_u32 vcc, -1, v{ACC+4}")
                a(f"s_cbranch_vccz {ok}")
            gather(SB)
            sum16(RING, ACC, 16)
            check(RING, "L_ok", "a")
            a.label("L_poll")
            gather(SC)
            sum16(SB, ACC, 16)
            check(SB, "L_ok", "b")
            gather(SB)
            sum16(SC, ACC, 16)
            check(SC, "L_ok", "c")
            a("s_branch L_poll")
            a.label("L_ok")
            if stamp == 5: a("s_waitcnt lgkmcnt(0)"); a("s_memrealtime s[98:99]")
            a(f"v_permlane32_swap_b32 v{ACC}, v{ACC+2}")
            a(f"v_permlane32_swap_b32 v{ACC+1}, v{ACC+3}")
            a(f"v_pk_add_f32 {vr(ACC,2)}, {vr(ACC,2)}, {vr(ACC+2,2)}")
            a(f"v_pk_add_f32 {vr(ACC,2)}, {vr(ACC,2)}, {vr(YB,2)}")
            a(f"v_cvt_pk_bf16_f32 v{ACC}, v{ACC}, v{ACC+1}")
            a(f"buffer_store_dword v{ACC}, v7, s[80:83], s51 offen {oflags}")
            if ending == "e2":
                a("s_cmp_lg_u32 s3, 0")
                a("s_cbranch_scc1 L_hend")
                a(f"v_mov_b32 v{ACC+4}, 0x10000")
                a(f"v_mov_b32 v{ACC+5}, s53")
                a("s_mov_b64 exec, 1")
                a(f"buffer_store_dword v{ACC+5}, v{ACC+4}, s[76:79], 0 offen")
                a("s_mov_b64 exec, -1")
    a.label("L_hend")
    if dbl:
        a("s_waitcnt vmcnt(0)")
        a("s_memrealtime s[92:93]")
        a("s_waitcnt lgkmcnt(0)")
        if dbl == 1: a("s_sub_u32 s94, s92, s88")
        else: a("s_sub_u32 s94, s90, s88"); a("s_mul_i32 s94, s94, 4")
        a.label("L_dbl")
        a("s_memrealtime s[96:97]")
        a("s_waitcnt lgkmcnt(0)")
        a("s_sub_u32 s95, s96, s92")
        a("s_cmp_lt_u32 s95, s94")
        a("s_cbranch_scc1 L_dbl")
    if stamp and stamp != 7:
        a("s_waitcnt vmcnt(0)")
        a("s_memrealtime s[100:101]")
        a("s_cmp_lg_u32 s3, 0")
        a("s_cbranch_scc1 L_done")
        a("s_mov_b64 exec, 1")
        a("s_getreg_b32 s35, hwreg(HW_REG_XCC_ID)")
        a("s_and_b32 s35, s35, 15")
        a("s_getreg_b32 s44, hwreg(HW_REG_HW_ID)")
        a("s_lshl_b32 s44, s44, 4")
        a("s_or_b32 s35, s35, s44")
        a("s_waitcnt lgkmcnt(0)")
        for i, r in enumerate([88, 90, 92, 94, 96, 98, 100]): a(f"v_mov_b32 v{8+i}, s{r}")
        a("v_mov_b32 v15, s35")
        if stamp == 6:
            a("v_not_b32 v16, v8")
            a("v_not_b32 v17, v11")
            a("v_mov_b32 v3, 0")
            for i, r in enumerate([16, 8, 9, 10, 17, 11, 14]):
                a(f"buffer_atomic_umax v{r}, v3, s[84:87], 0 offen offset:{4*i} sc1")
        else:
            a("s_lshl_b32 s35, s2, 8")
            a("s_add_u32 s35, s35, 0x100000")
            a("v_mov_b32 v3, s35")
            a("global_store_dwordx4 v3, v[8:11], s[30:31]")
            a("global_store_dwordx4 v3, v[12:15], s[30:31] offset:16")
    a.label("L_done")
    a("s_endpgm")
    a.pad()
    hdr = HEADER.replace("@@LAUNCH@@", f"; @launch grid=(256,1,1) block=({(NS+NH)*64},1,1) lds={L_KV + 4*PL*8192 if PL else LDS_BYTES}")
    tail = f""".section .rodata,"a"
.p2align 6
.amdhsa_kernel {KN}
  .amdhsa_next_free_vgpr 256
  .amdhsa_next_free_sgpr 102
  .amdhsa_accum_offset 256
  .amdhsa_group_segment_fixed_size 0
  .amdhsa_kernarg_size 112
  .amdhsa_user_sgpr_count 2
  .amdhsa_user_sgpr_kernarg_segment_ptr 1
  .amdhsa_system_sgpr_workgroup_id_x 1
.end_amdhsa_kernel
"""
    return hdr + DOC + a.text() + tail

if __name__ == "__main__":
    out = sys.argv[1]
    kw = {}
    for s in sys.argv[2:]:
        k, v = s.split("=")
        if k in ("winp", "sched", "winf", "abl", "ending", "wflags", "kvflags", "qflags", "Dq", "Dh", "boost", "order", "pure4", "p4win", "p4wo", "ctl", "cflags", "oflags", "rcols", "wfin", "pfl", "stf", "gaf", "fb"): v = v.replace("+", " ")
        else: v = int(v)
        kw[k] = v
    open(out, "w").write(gen(**kw))
```

```python
import sys, os, struct
sys.path.insert(0, os.path.dirname(os.path.abspath(__file__)))
from asmlib import Asm
KN = "gated_mix__mha_block_cached__moe_arch_mod__decode_kernel"
HEADER = open(os.path.join(os.path.dirname(os.path.abspath(__file__)), "header.txt")).read()


DOC = """; ---------------------------------------------------------------------------------------------
; Fused decode step: out = g*attn(x) + (1-g)*(x + sigmoid(x.w_r)*SwiGLU(x)),  B=8 H=32 Sk=4096 Dh=128
;   4 helper waves : q = x.Wq[:,h], Wo[h] slice -> registers, gates, 64-column slice of the SwiGLU FFN,
; ---------------------------------------------------------------------------------------------
"""

def f2u(x): return struct.unpack("<I", struct.pack("<f", x))[0]
LOG2E = 1.4426950408889634
CSCALE = LOG2E * (128 ** -0.5)

L_QPART = 0
L_FPART = 2048
L_OPART = 4096
L_ML    = 6144
L_CNT   = 6208
L_FLAG  = 6212
L_SC = 6400
L_KV = 6400 + 16384
LDS_BYTES = 6272

class VM:
    def __init__(self, a): self.a = a; self.q = []; self.seen = set()
    def issue(self, tag): self.q.append(tag); self.seen.add(tag)
    def wait(self, tag):
        assert tag in self.seen, tag
        if tag not in self.q: return
        idx = max(i for i, t in enumerate(self.q) if t == tag)
        n = len(self.q) - 1 - idx
        assert n <= 63
        self.a(f"s_waitcnt vmcnt({n})")
        self.q = self.q[idx+1:]
    def pace(self, n):
        if len(self.q) > n - 1:
            self.a(f"s_waitcnt vmcnt({n-1})")
            self.q = self.q[len(self.q) - (n - 1):] if n > 1 else []
    def waitall(self):
        self.a("s_waitcnt vmcnt(0)"); self.q = []

def vr(b, n=4): return f"v[{b}:{b+n-1}]"
DPPM = "row_mask:0xf bank_mask:0xf"
def pat(s):
    s = str(s)
    return [int(x) for x in s.split("_")] if "_" in s else [int(c) for c in s]

def gen(PRO=5, winp="56", sched="-1:5:5", fin=0, winf=8, lagf=2, Dq=8, Dh=2, wflags="nt", kvflags="nt",
        stamp=0, ending="e0", abl="", tlead=1, mapmode=0, qflags=None, roll=1, PL=0, boost="", il=1, order="KKKKVVVV", pure=0, pureU=8, sfirst=0, sprio=0, pure4="", p4win="5", p4wo=None, ctl="", cflags="sc1", cearly=0, dry=1, oflags="", win0=0, U=1, b2a=2, ra=0, rb=0, rsh=15, rcols="", pm=0, sp=0, nset=2, pgap=0, nV=6, wfin="", pf=0, pfl="", pfw=7, ep1=1, stf="sc1", gaf="sc1", R=4, touch=0, dbl=0, fb="", pv="", pk="", wmid="", rk=0):
    if qflags is None: qflags = wflags
    NS, NH, NG = 4, 4, 64
    a = Asm()
    a("s_cmp_ge_u32 s2, 256")
    a("s_cbranch_scc1 L_done")
    a("s_load_dwordx16 s[4:19], s[0:1], 0")
    a("s_load_dwordx8 s[20:27], s[0:1], 64")
    a("s_load_dwordx4 s[28:31], s[0:1], 96")
    if (stamp and stamp != 7) or dbl: a("s_memrealtime s[88:89]")
    a("v_lshrrev_b32 v1, 6, v0")
    a("v_and_b32 v0, 63, v0")
    a("v_readfirstlane_b32 s3, v1")
    if mapmode == 0:
        a("s_and_b32 s33, s2, 7")
        a("s_lshl_b32 s33, s33, 2")
        a("s_lshr_b32 s32, s2, 3")
        a("s_and_b32 s34, s32, 3")
        a("s_add_u32 s33, s33, s34")
        a("s_lshr_b32 s32, s32, 2")
    elif mapmode == 1:
        a("s_and_b32 s33, s2, 6")
        a("s_lshl_b32 s33, s33, 2")
        a("s_bfe_u32 s34, s2, 0x30003")
        a("s_add_u32 s33, s33, s34")
        a("s_and_b32 s32, s2, 1")
        a("s_lshl_b32 s32, s32, 2")
        a("s_lshr_b32 s34, s2, 6")
        a("s_add_u32 s32, s32, s34")
    elif mapmode == 2:
        a("s_and_b32 s33, s2, 3")
        a("s_lshl_b32 s33, s33, 3")
        a("s_bfe_u32 s34, s2, 0x30003")
        a("s_add_u32 s33, s33, s34")
        a("s_and_b32 s32, s2, 4")
        a("s_lshr_b32 s34, s2, 6")
        a("s_add_u32 s32, s32, s34")
    a("s_mov_b32 s46, 0x05040100")
    a("s_mov_b32 s47, 0x07060302")
    a(f"s_mov_b32 s48, {f2u(CSCALE):#x}")
    if sfirst: a("s_xor_b32 s3, s3, 4")
    a(f"s_cmp_lt_u32 s3, {NH}")
    a("s_cbranch_scc0 L_stream")

    def reduce8(b):
        for j in range(4): a(f"v_permlane32_swap_b32 v{b+j}, v{b+j+4}")
        for j in range(0, 4, 2): a(f"v_pk_add_f32 {vr(b+j,2)}, {vr(b+j,2)}, {vr(b+j+4,2)}")
        for j in range(2): a(f"v_permlane16_swap_b32 v{b+j}, v{b+j+2}")
        a(f"v_pk_add_f32 {vr(b,2)}, {vr(b,2)}, {vr(b+2,2)}")

    vm = vmh = VM(a)
    a("v_and_b32 v2, 15, v0")
    a("v_lshrrev_b32 v3, 4, v0")
    RG_ROWS, HW_ROWS, P_ROWS = (32, 128, 2) if sp else (2, 8, 32)
    a(f"v_lshlrev_b32 v5, {13 + RG_ROWS.bit_length() - 1}, v3")
    a("v_lshl_add_u32 v5, v2, 4, v5")
    a("v_add_u32 v6, 0x2000, v5")
    a(f"s_lshl_b32 s44, s3, {13 + HW_ROWS.bit_length() - 1}")
    a("s_lshl_b32 s35, s33, 8")
    a("s_add_u32 s44, s44, s35")
    a(f"v_lshlrev_b32 v4, {P_ROWS.bit_length()}, v2")
    a(f"v_lshl_add_u32 v4, v3, {RG_ROWS.bit_length()}, v4")
    a(f"s_lshl_b32 s45, s3, {HW_ROWS.bit_length()}")
    a("s_lshl_b32 s35, s32, 10")
    a("s_mov_b32 s38, 1024"); a("s_mov_b32 s39, 0x20000")
    a("s_mov_b32 s42, 0x400000"); a("s_mov_b32 s43, 0x20000")
    if "q" in abl: a("s_mov_b32 s42, 0")
    a("s_waitcnt lgkmcnt(0)")
    a("s_add_u32 s36, s4, s35"); a("s_addc_u32 s37, s5, 0")
    a("s_mov_b32 s40, s10"); a("s_mov_b32 s41, s11")
    ACC = 8
    XP = 16
    GA = 18
    G_, GR_, YB, HP, CNTA, XR = 20, 21, 22, 24, 25, 26
    TP = 40
    RING = 56
    WO = 120
    GOFF = 24 + 8
    NR = 16
    stream = []
    st = {"issued": 0, "consumed": 0, "limit": 0}
    def bload(srd, voff, soff, imm, post=None):
        def f(dst):
            a(f"buffer_load_dwordx4 {vr(dst)}, {voff}, {srd}, {soff} offen offset:{imm} {qflags if srd == 's[40:43]' else wflags}")
            if post: a(post)
        return f
    for p in range(16):
        stream.append(bload("s[40:43]", "v5", "s44", 0))
        stream.append(bload("s[40:43]", "v6", "s44", 0, f"s_add_u32 s44, s44, {P_ROWS*8192}"))
    def gload(imm, adv):
        def f(dst):
            a(f"global_load_dwordx4 {vr(dst)}, {vr(GA,2)}, off offset:{imm} {wflags}")
            if adv:
                a(f"v_add_co_u32 v{GA}, vcc, {P_ROWS*3584}, v{GA}")
                a(f"v_addc_co_u32 v{GA+1}, vcc, 0, v{GA+1}, vcc")
        return f
    for p in range(16):
        stream.append(bload("s[64:67]", "v7", "s51", 0))
        stream.append(bload("s[64:67]", "v7", "s51", 1024, "s_add_u32 s51, s51, 8192"))
    for p in range(16):
        stream.append(gload(0, False)); stream.append(gload(3584, p < 15))
    for p in range(8):
        stream.append(bload("s[60:63]", "v7", "s50", 0))
        stream.append(bload("s[60:63]", "v7", "s50", 1024, "s_add_u32 s50, s50, 8192"))
    def issue_one():
        k = st["issued"]
        stream[k](RING + (k % NR) * 4)
        vmh.issue(("W", k))
        st["issued"] += 1
    def issue_until(depth):
        while st["issued"] < st["limit"] and st["issued"] - st["consumed"] < depth:
            issue_one()
    def depth_for(k):
        d = pat(Dq) if k < 32 else pat(Dh)
        return d[k % len(d)]
    def advance(kneed):
        while ("W", kneed) not in vmh.seen or ("W", kneed) in vmh.q:
            k = st["issued"]
            if k < st["limit"] and k - st["consumed"] < NR:
                vmh.pace(depth_for(k))
                issue_one()
            else:
                vmh.wait(("W", kneed))
    st["limit"] = 64
    a(f"buffer_load_dword v{XP}, v4, s[36:39], s45 offen")
    vm.issue("XQ")
    issue_until(max(pat(Dq)) if roll else int(Dq))
    a("s_branch L_helper")

    a.label("L_stream")
    vm = VM(a)
    assert ending == "e3"
    a(f"s_sub_u32 s3, s3, {NH}")
    if pm:
        a("s_and_b32 s35, s3, 1"); a("s_lshl_b32 s35, s35, 13")
        a("s_lshr_b32 s34, s3, 1"); a("s_lshl_b32 s34, s34, 10"); a("s_add_u32 s35, s35, s34")
    else:
        a(f"s_lshl_b32 s35, s3, {10 + (U.bit_length() - 1)}")
    a("v_lshlrev_b32 v1, 4, v0")
    a("v_add_u32 v1, s35, v1")
    a("s_lshl_b32 s34, s32, 5")
    a("s_add_u32 s34, s34, s33")
    a("s_lshl_b32 s35, s34, 20")
    a("s_mov_b32 s38, 0x100000")
    a("s_mov_b32 s39, 0x20000")
    a("s_mov_b32 s42, 0x100000")
    a("s_mov_b32 s43, 0x20000")
    rot = ra or rb or rcols
    if rcols:
        a("s_mov_b32 s44, 0")
        for p, ch in enumerate(rcols.lstrip("c")):
            if int(ch):
                a(f"s_bitcmp1_b32 s34, {p}")
                a(f"s_cselect_b32 s45, {int(ch) << 17}, 0")
                a("s_xor_b32 s44, s44, s45")
    elif rot:
        a("s_and_b32 s44, s2, 7"); a(f"s_mul_i32 s44, s44, {ra}")
        a("s_lshr_b32 s45, s2, 3"); a(f"s_mul_i32 s45, s45, {rb}")
        a("s_add_u32 s44, s44, s45"); a(f"s_lshl_b32 s44, s44, {rsh}"); a("s_and_b32 s44, s44, 0xfffff")
    else:
        a("s_mov_b32 s44, 0")
    if pf:
        a("s_and_b32 s62, s2, 7")
        a("s_lshr_b32 s63, s2, 3")
        a("s_lshl_b32 s63, s63, 2")
        a("s_add_u32 s63, s63, s3")
        a("v_lshlrev_b32 v2, 4, v0")
        a("s_mov_b32 s66, 0x400000"); a("s_mov_b32 s67, 0x20000")
        a("s_mov_b32 s70, 0x400000"); a("s_mov_b32 s71, 0x20000")
        a("s_lshl_b32 s45, s63, 15"); a("s_lshl_b32 s57, s62, 10"); a("s_add_u32 s45, s45, s57")
        a("s_lshl_b32 s84, s62, 19"); a("s_lshl_b32 s57, s63, 12"); a("s_add_u32 s84, s84, s57")
    a("s_waitcnt lgkmcnt(0)")
    if not pf:
        a("s_add_u32 s36, s6, s35")
        a("s_addc_u32 s37, s7, 0")
    BUF = 48
    Q, O, A, UE, WE, SC, M, Lr, T = 4, 8, 16, 24, 26, 28, 30, 31, 32
    PK, AL = 16, 28
    def reg(slot, j): return BUF + slot * 32 + j * 4
    cur = {"wins": pat(winp), "n": 0}
    def setwin(p): cur["wins"] = p; cur["n"] = 0
    def nextwin():
        wins = cur["wins"]; n = wins[cur["n"] % len(wins)]; cur["n"] += 1; return n
    def imm(j): return (j % 2) * 2048 if pm else (j % U) * 1024
    def post(j):
        if pm:
            if j % 2 == 1: a(f"s_add_u32 s44, s44, {4096 if j % 4 == 1 else 12288}")
        elif j % U == U - 1: a(f"s_add_u32 s44, s44, {NS*U*1024}")
        if rot and (j == 7 or rsh < 15): a("s_and_b32 s44, s44, 0xfffff")
    def issue1(slot, j, ten):
        vm.pace(nextwin())
        a(f"buffer_load_dwordx4 {vr(reg(slot,j))}, v1, {'s[36:39]' if ten == 'K' else 's[40:43]'}, s44 offen offset:{imm(j)} {kvflags}")
        vm.issue((slot, j)); post(j)
    def issueL(g, j):
        a(f"s_add_u32 m0, s54, {g*8192 + j*1024 - imm(j)}")
        vm.pace(nextwin())
        a(f"buffer_load_dwordx4 v1, s[36:39], s44 offen offset:{imm(j)} {kvflags} lds")
        vm.issue(("L", g)); post(j)
    def lane_of(i): return ((i & 1) << 3) | (((i >> 1) & 1) << 2) | ((i >> 2) & 1) | (((i >> 3) & 1) << 1)
    def procK(slot, gq, staged=False):
        L = []
        for hf in range(2):
            js = range(4 * hf, 4 * hf + 4)
            if staged:
                if hf == 0: L.append("s_waitcnt lgkmcnt(0)")
            else: L.append(("wait", (slot, 4 * hf + 3)))
            for j in js: L.append(f"v_dot2_f32_bf16 v{A+j}, v{reg(slot,j)}, v{Q}, 0")
            for c in range(1, 4):
                for j in js: L.append(f"v_dot2c_f32_bf16 v{A+j}, v{reg(slot,j)+c}, v{Q+c}")
            b = A + 4 * hf
            for e in range(2): L.append(f"v_add_f32_dpp v{b+e}, v{b+e}, v{b+e} row_ror:8 row_mask:0xf bank_mask:0x3")
            for e in range(2): L.append(f"v_add_f32_dpp v{b+e}, v{b+2+e}, v{b+2+e} row_ror:8 row_mask:0xf bank_mask:0xc")
        D = UE if gq % 2 == 0 else A + 2
        for e in range(2): L.append(f"v_add_f32_dpp v{D+e}, v{A+e}, v{A+e} row_half_mirror row_mask:0xf bank_mask:0x5")
        for e in range(2): L.append(f"v_add_f32_dpp v{D+e}, v{A+4+e}, v{A+4+e} row_half_mirror row_mask:0xf bank_mask:0xa")
        def lvl(d1, d2, mask, qp, R):
            for e in range(2):
                L.append(f"v_cndmask_b32 v{T+2*e}, v{d1+e}, v{d2+e}, {mask}")
                L.append(f"v_cndmask_b32 v{T+2*e+1}, v{d2+e}, v{d1+e}, {mask}")
            for e in range(2): L.append(f"v_add_f32_dpp v{R+e}, v{T+2*e+1}, v{T+2*e} {qp} {DPPM}")
        if gq % 2 == 1:
            lvl(UE, A + 2, "s[58:59]", "quad_perm:[1,0,3,2]", WE if gq == 1 else A + 6)
        if gq == 3:
            lvl(WE, A + 6, "s[60:61]", "quad_perm:[2,3,0,1]", SC)
            L.append(f"ds_write_b64 v2, {vr(SC,2)}")
            L.append(f"v_max3_f32 v{M}, v{SC}, v{SC+1}, v{M}")
            L.append("v_add_u32 v2, 0x200, v2")
        return L
    def procV(slot, gq):
        L = []
        for t in range(4):
            tt = T + (t % 2) * 8
            L.append(("wait", (slot, 2 * t + 1)))
            for c in range(4):
                L.append(f"v_perm_b32 v{tt+2*c}, v{reg(slot,2*t+1)+c}, v{reg(slot,2*t)+c}, s46")
                L.append(f"v_perm_b32 v{tt+2*c+1}, v{reg(slot,2*t+1)+c}, v{reg(slot,2*t)+c}, s47")
            for j in range(8): L.append(f"v_dot2c_f32_bf16_dpp v{O+j}, v{PK}, v{tt+j} row_newbcast:{lane_of(4*gq+t)} {DPPM}")
        if gq == 3:
            for u in range(7): L.append(f"v_mov_b32 v{PK+u}, v{PK+u+1}")
        return L
    def wave_reduce(r, tmp, op):
        L = []
        for dpp in ("quad_perm:[1,0,3,2]", "quad_perm:[2,3,0,1]", "row_half_mirror", "row_mirror"):
            L.append(f"{op}_dpp v{r}, v{r}, v{r} {dpp} {DPPM}")
        for sw in ("v_permlane32_swap_b32", "v_permlane16_swap_b32"):
            L += [f"v_mov_b32 v{tmp}, v{r}", f"{sw} v{r}, v{tmp}", f"{op} v{r}, v{r}, v{tmp}"]
        return L
    def boundary():
        L = ["v_subrev_u32 v2, 0x1000, v2"]
        for u in range(8): L.append(f"ds_read_b64 {vr(T+2*u,2)}, v2 offset:{u*512}")
        L += wave_reduce(M, SC, "v_max_f32")
        L.append(f"v_mul_f32 v{SC}, s48, v{M}")
        L.append(f"v_mov_b32 v{Lr}, 0")
        L.append("s_waitcnt lgkmcnt(0)")
        for u in range(16): L.append(f"v_fma_f32 v{T+u}, v{T+u}, s48, -v{SC}")
        for u in range(16): L.append(f"v_exp_f32 v{T+u}, v{T+u}")
        for u in range(8): L.append(f"v_cvt_pk_bf16_f32 v{PK+u}, v{T+2*u}, v{T+2*u+1}")
        for u in range(8): L.append(f"v_dot2c_f32_bf16 v{Lr}, 0x3f803f80, v{PK+u}")
        L += wave_reduce(Lr, SC, "v_add_f32")
        L += ["s_lshl_b32 s35, s3, 2", "v_mov_b32 v3, s35", "v_mov_b32 v2, 0", "s_mov_b64 exec, 1",
              f"ds_write_b32 v3, v{M} offset:{L_ML}", f"ds_write_b32 v3, v{Lr} offset:{L_ML+16}", "s_mov_b64 exec, -1"]
        return L
    def emit(L):
        for x in L:
            if isinstance(x, tuple): vm.wait(x[1])
            elif x.endswith(":"): a.label(x[:-1])
            else: a(x)
    def rnd(islot, ten, L, extra0=()):
        L = list(L)
        for j in range(8):
            issue1(islot, j, ten)
            if extra0 and isinstance(extra0[0], tuple):
                for (pj, X) in extra0:
                    if pj == j: emit(X)
            elif j == 0: emit(extra0)
            budget = -(-len(L) // (8 - j))
            masked = False
            while L and (j == 7 or budget > 0 or masked):
                x = L[0]
                if isinstance(x, tuple) and j < 7 and x[1] in vm.q: break
                if x == "s_mov_b64 exec, 1": masked = True
                if x == "s_mov_b64 exec, -1": masked = False
                emit([L.pop(0)]); budget -= 1
    if pf:
        assert mapmode == 0
        a("s_mov_b32 s64, s10"); a("s_mov_b32 s65, s11")
        pr = [BUF + 4 * 32 + 4 * i for i in range(14)]
        n_ = [0]
        def pl(voff, srd, soff, im):
            vm.pace(pfw)
            a(f"buffer_load_dwordx4 {vr(pr[n_[0]])}, {voff}, {srd}, {soff} offen offset:{im} {pfl}")
            vm.issue(("P", n_[0])); n_[0] += 1
        for i in range(4):
            pl("v2", "s[64:67]", "s45", 0)
            if i < 3: a("s_add_u32 s45, s45, 8192")
        if pf >= 2:
            a("s_mov_b32 s68, s12"); a("s_mov_b32 s69, s13")
            pl("v2", "s[68:71]", "s84", 0)
            a("s_add_u32 s36, s6, s35")
            a("s_addc_u32 s37, s7, 0")
            if touch:
                a("s_add_u32 s40, s8, s35"); a("s_addc_u32 s41, s9, 0")
                a("s_mov_b64 exec, 1")
                a("s_cmp_lg_u32 s3, 0"); a("s_cbranch_scc1 L_t1")
                a("buffer_load_dword v240, v1, s[36:39], s44 offen nt")
                a.label("L_t1")
                if touch >= 2:
                    a("s_cmp_lg_u32 s3, 1"); a("s_cbranch_scc1 L_t2")
                    a("buffer_load_dword v240, v1, s[40:43], s44 offen nt")
                    a.label("L_t2")
                a("s_mov_b64 exec, -1")
            a("s_cmp_lt_u32 s62, 7")
            a("s_cselect_b32 s74, 0x1c0000, 0"); a("s_mov_b32 s75, 0x20000"); a("s_mov_b32 s72, s18"); a("s_mov_b32 s73, s19")
            a("s_mov_b32 s78, s74"); a("s_mov_b32 s79, 0x20000"); a("s_mov_b32 s76, s20"); a("s_mov_b32 s77, s21")
            a("s_mov_b32 s82, 0x1c0000"); a("s_mov_b32 s83, 0x20000"); a("s_mov_b32 s80, s22"); a("s_mov_b32 s81, s23")
            a("v_lshrrev_b32 v3, 5, v0"); a("v_mul_u32_u24 v3, 3584, v3"); a("v_and_b32 v4, 31, v0"); a("v_lshl_add_u32 v3, v4, 4, v3")
            a(f"s_mul_i32 s45, s63, {4*3584}"); a("s_lshl_b32 s57, s62, 9"); a("s_add_u32 s45, s45, s57")
            a("s_add_u32 s57, s45, 7168")
            for i in range(1, 4): pl("v2", "s[68:71]", "s84", i * 1024)
            for srd in ("s[72:75]", "s[76:79]"):
                pl("v3", srd, "s45", 0); pl("v3", srd, "s57", 0)
            a("s_lshl_b32 s45, s62, 18"); a("s_lshl_b32 s57, s63, 11"); a("s_add_u32 s45, s45, s57")
            for i in range(2): pl("v2", "s[80:83]", "s45", i * 1024)
    NSLOT = PRO + 1
    pA, pB, nb0, nbx, nbq, nbf, nbn, nbc = str(boost).split(",")
    pA, pB = pat(pA), pat(pB)
    init = [f"v_mov_b32 v{M}, 0xff800000"] + [f"v_mov_b32 v{O+j}, 0" for j in range(8)]
    init += ["s_add_u32 s40, s8, s35", "s_addc_u32 s41, s9, 0", f"s_mul_i32 s54, s3, {PL*8192}", f"s_add_u32 s54, s54, {L_KV}",
             "v_and_b32 v2, 15, v0", "v_lshlrev_b32 v2, 5, v2", "s_getreg_b32 s49, hwreg(HW_REG_XCC_ID)", "s_and_b32 s49, s49, 1",
             "s_lshl_b32 s35, s32, 5", "s_add_u32 s52, s28, s35", "s_addc_u32 s53, s29, 0",
             "s_mov_b32 s58, 0xaaaaaaaa", "s_mov_b32 s59, 0xaaaaaaaa", "s_mov_b32 s60, 0xcccccccc", "s_mov_b32 s61, 0xcccccccc",
             "v_lshlrev_b32 v3, 4, v0", "v_add_u32 v3, s54, v3"]
    init += [f"s_mov_b32 s55, {nb0}",
             "s_cmp_eq_u32 s49, 0", f"s_cselect_b32 s57, {nbx}, 0", "s_add_u32 s55, s55, s57",
             "s_lshr_b32 s57, s10, 8", "s_add_u32 s57, s57, s33", "s_and_b32 s57, s57, 3", "s_cmp_eq_u32 s57, 1",
             f"s_cselect_b32 s57, {nbq}, 0", "s_add_u32 s55, s55, s57",
             "s_lshr_b32 s57, s18, 7", "s_add_u32 s57, s57, s33", "s_and_b32 s57, s57, 3", "s_cmp_eq_u32 s57, 3",
             f"s_cselect_b32 s57, {nbf}, 0", "s_cmp_lt_u32 s33, 28", f"s_cselect_b32 s57, s57, {-int(nbn)}", "s_add_i32 s55, s55, s57",
             "s_getreg_b32 s57, hwreg(HW_REG_HW_ID, 8, 4)", f"s_mul_i32 s57, s57, {nbc}", "s_lshr_b32 s57, s57, 3", "s_add_i32 s55, s55, s57",
             "s_max_i32 s55, s55, 0", "s_lshr_b32 s56, s2, 3", "s_and_b32 s56, s56, 7"]
    if fb:
        init += ["s_and_b32 s57, s2, 7", "s_mul_i32 s57, s57, 5", "s_lshr_b32 s86, s2, 3", "s_add_u32 s57, s57, s86", "s_and_b32 s57, s57, 31",
                 "s_mul_i32 s57, s57, 4352", "s_add_u32 s57, s57, 0x90000", "s_add_u32 s86, s30, s57", "s_addc_u32 s87, s31, 0",
                 "s_load_dword s85, s[86:87], 0 glc"]
    for g in range(PRO):
        for j in range(8):
            issue1(g, j, "K")
            if g == 0 and j == 4: emit(init)
    for g in range(PL):
        for j in range(8): issueL(g, j)
    a("s_barrier")
    if stamp == 8: a("s_memrealtime s[90:91]")
    TQ = [32, 40, 240, 248]
    qrd = []
    for hw in range(4):
        a(f"ds_read_b128 {vr(TQ[hw])}, v2 offset:{L_QPART + hw*512}")
        a(f"ds_read_b128 {vr(TQ[hw]+4)}, v2 offset:{L_QPART + hw*512 + 16}")
    qrd.append("s_waitcnt lgkmcnt(0)")
    for j in range(0, 8, 2): qrd.append(f"v_pk_add_f32 {vr(32+j,2)}, {vr(32+j,2)}, {vr(40+j,2)}")
    for j in range(0, 8, 2): qrd.append(f"v_pk_add_f32 {vr(240+j,2)}, {vr(240+j,2)}, {vr(248+j,2)}")
    for j in range(0, 8, 2): qrd.append(f"v_pk_add_f32 {vr(32+j,2)}, {vr(32+j,2)}, {vr(240+j,2)}")
    for j in range(4): qrd.append(f"v_cvt_pk_bf16_f32 v{Q+j}, v{32+2*j}, v{33+2*j}")
    qrd += ["s_lshl_b32 s35, s3, 12", f"s_add_u32 s35, s35, {L_SC}", "v_lshl_add_u32 v2, v0, 3, s35"]
    if rk: qrd += [f"v_mov_b32 v251, {L_ML+40}", "v_mov_b32 v252, 1", "s_lshl_b32 s55, s55, 1", f"s_sub_i32 s55, s55, {3*rk}", "s_lshl_b32 s56, s56, 1"]
    loc = {g: g for g in range(PRO)}
    inlds = list(range(PRO, PRO + PL))
    stagedset = set()
    free = list(range(PRO, NSLOT))
    st_ = {"gi": PRO + PL, "gp": 0}
    def proc(g):
        sl = loc[g]
        if g < 32: L = procK(sl, g % 4, staged=(g in stagedset))
        else: L = (boundary() if g == 32 else []) + procV(sl, g % 4)
        free.append(sl)
        if inlds and len(free) >= 2:
            gl_ = inlds.pop(0); ls = free.pop()
            L.append(("wait", ("L", gl_ - PRO)))
            for j in range(8): L.append(f"ds_read_b128 {vr(reg(ls,j))}, v3 offset:{(gl_-PRO)*8192 + j*1024}")
            loc[gl_] = ls; stagedset.add(gl_)
        return L
    def uround(pre=(), extra0=(), lag=1):
        gi, gp = st_["gi"], st_["gp"]
        isl = free.pop(0); loc[gi] = isl
        if gi == 32 and not rot: a("s_mov_b32 s44, 0")
        n = max(min(2, gi - gp - (lag - 1)), 0)
        L = list(pre)
        for g in range(gp, gp + n): L += proc(g)
        rnd(isl, "K" if gi < 32 else "V", L, extra0)
        st_["gi"] += 1; st_["gp"] += n
    a("; ---- catch-up rounds (two K groups consumed per group issued)")
    uround(pre=qrd)
    while st_["gi"] - st_["gp"] > 1 or st_["gp"] % 4: uround()
    if fb:
        n2, cA, cB, t1, t2, fbr = fb.split(",")
        n2, t1, t2, fbr = int(n2), int(t1), int(t2), int(fbr); cA, cB = pat(cA), pat(cB)
    PV = tuple(pat(x) for x in pv.split(",")) if pv else (pA, pB)
    PKp = tuple(pat(x) for x in pk.split(",")) if pk else (pA, pB)
    Wall = max(pat(winp) + pA + pB + ((cA + cB) if fb else []) + PV[0] + PV[1] + PKp[0] + PKp[1] + (pat(wmid) if wmid else []))
    nK = (28 - st_["gp"]) // 4
    NIT = nK + nV - (n2 if fb else 0)
    def loop(tag, n, ten, pats=None, den=None, hook=False):
        pats = pats or (pA, pB); den = den or NIT
        sa = loc[st_["gp"]]; sb = free[0]
        worst = [(sa, j) for j in range(8)][-Wall:]
        a(f"s_mov_b32 s45, {n}")
        if rk:
            den = 2 * den
            a(f"ds_add_rtn_u32 v250, v251, v252")
        a.label(f"L_top{tag}")
        if rk:
            a("s_waitcnt lgkmcnt(0)")
            a("v_readfirstlane_b32 s57, v250")
            a("s_bfe_u32 s57, s57, 0x20006")
            a(f"s_mul_i32 s57, s57, {2*rk}")
            a("s_add_i32 s56, s56, s57")
            a("s_add_i32 s56, s56, s55")
            a("s_max_i32 s56, s56, 0")
        else:
            a("s_add_u32 s56, s56, s55")
        a(f"s_cmp_ge_u32 s56, {den}")
        a(f"s_cbranch_scc1 L_B{tag}")
        for v, pp in (("A", pats[0]), ("B", pats[1])):
            a.label(f"L_{v}{tag}")
            if v == "B": a(f"s_sub_u32 s56, s56, {den}")
            assert 32 % len(pp) == 0
            setwin(pp); vm.q = list(worst)
            x, y = sa, sb
            for gq in range(4):
                ex = ()
                if rk and gq == 3: ex = [(6, ["s_cmp_eq_u32 s45, 1", f"s_cbranch_scc1 L_rk{v}{tag}", "ds_add_rtn_u32 v250, v251, v252", f"L_rk{v}{tag}:"])]
                if hook:
                    cond = ["s_sub_u32 s57, s45, 1", "s_or_b32 s57, s57, s3", "s_cmp_lg_u32 s57, 0"]
                    if gq == fbr: ex = [(0, cond + [f"s_cbranch_scc1 L_h1{v}", "s_mov_b32 s84, 1", "s_atomic_add s84, s[86:87], 0 glc", f"L_h1{v}:"])]
                    if gq == 3: ex = [(1, cond + [f"s_cbranch_scc1 L_h2{v}", "s_waitcnt lgkmcnt(0)", "s_sub_u32 s84, s84, s85", "v_mov_b32 v3, s84",
                                              f"ds_write_b32 v2, v3 offset:{L_ML+36}", f"L_h2{v}:"]), (6, [f"ds_read_b32 v3, v2 offset:{L_ML+36}"])]
                rnd(y, ten, procK(x, gq) if ten == "K" else procV(x, gq), ex)
                x, y = y, x
            a("s_sub_u32 s45, s45, 1")
            a("s_cmp_lg_u32 s45, 0")
            a(f"s_cbranch_scc1 L_top{tag}")
            if v == "A": a(f"s_branch L_x{tag}")
        a.label(f"L_x{tag}")
        vm.q = list(worst)
        st_["gp"] += 4 * n; st_["gi"] += 4 * n
        loc[st_["gp"]] = sa
        setwin(pA)
    loop("K", nK, "K", pats=PKp)
    if wmid: setwin(pat(wmid))
    if stamp == 8: a("s_memrealtime s[92:93]")
    while st_["gp"] < 36: uround()
    a("; ---- V loop")
    if fb:
        loop("V", nV - n2, "V", hook=True)
        a("s_waitcnt lgkmcnt(0)")
        a("v_readfirstlane_b32 s57, v3")
        a(f"s_cmp_ge_u32 s57, {t1}"); a("s_cselect_b32 s55, 1, 0")
        a(f"s_cmp_ge_u32 s57, {t2}"); a("s_cselect_b32 s55, 2, s55")
        a("s_mov_b32 s56, 1")
        loop("W", n2, "V", pats=(cA, cB), den=2)
    else:
        loop("V", nV, "V", pats=PV)
    if stamp == 8: a("s_memrealtime s[94:95]")
    tk = ["s_cmp_lg_u32 s3, 0", "s_cbranch_scc1 L_tk1",
          "s_mov_b32 s57, 0x1000000",
          "L_tk0:", "s_sub_u32 s57, s57, 1", "s_cbranch_scc1 L_tk3", f"ds_read_b32 v3, v2 offset:{L_CNT}", "s_waitcnt lgkmcnt(0)", "v_readfirstlane_b32 s50, v3",
          f"s_cmp_lt_u32 s50, {NH}", "s_cbranch_scc1 L_tk0", "L_tk3:",
          "s_mov_b32 s50, 1", "s_atomic_add s50, s[52:53], 0 glc", "L_tk1:"]
    setwin(pat(winf))
    wf = [int(x) for x in wfin.split("_")] if wfin else []
    while st_["gi"] < 64:
        left = 64 - st_["gi"]
        w_ = None
        if wf:
            w_ = wf[-left] if left <= len(wf) else None
            setwin([w_] if w_ else pA)
        uround(extra0=tk if st_["gi"] == 63 else (), lag=2 if (w_ and w_ > 8) else 1)
    while st_["gp"] < 63:
        emit(proc(st_["gp"])); st_["gp"] += 1
    Lp = procV(loc[63], 3)[:-7]
    emit(Lp[:17 * b2a])
    a("s_cmp_lg_u32 s3, 0")
    a("s_cbranch_scc1 L_tk2")
    a("s_waitcnt lgkmcnt(0)")
    a("v_mov_b32 v3, s50")
    a(f"ds_write_b32 v2, v3 offset:{L_ML+32}")
    a.label("L_tk2")
    a("s_waitcnt lgkmcnt(0)")
    a("s_barrier")
    a(f"ds_read_b128 {vr(240)}, v2 offset:{L_ML}")
    a(f"ds_read_b128 {vr(244)}, v2 offset:{L_ML+16}")
    a("s_lshl_b32 s35, s3, 9")
    a("v_lshl_add_u32 v3, v0, 3, s35")
    a("s_waitcnt lgkmcnt(0)" if stamp == 8 else "s_waitcnt lgkmcnt(1)")
    a("v_max3_f32 v248, v240, v241, v242")
    a("v_max_f32 v248, v248, v243")
    a("v_mul_f32 v248, s48, v248")
    for w in range(4): a(f"v_fma_f32 v{240+w}, v{240+w}, s48, -v248")
    a(f"v_fma_f32 v{AL}, v{M}, s48, -v248")
    for w in range(4): a(f"v_exp_f32 v{240+w}, v{240+w}")
    a(f"v_exp_f32 v{AL}, v{AL}")
    a("s_waitcnt lgkmcnt(0)")
    a(f"v_mul_f32 v{Lr}, v240, v244")
    for w in range(1, 4): a(f"v_fmac_f32 v{Lr}, v{240+w}, v{244+w}")
    a(f"v_rcp_f32 v{Lr}, v{Lr}")
    a(f"v_mul_f32 v{AL}, v{AL}, v{Lr}")
    emit(Lp[17 * b2a:])
    reduce8(O)
    a(f"v_pk_mul_f32 {vr(O,2)}, {vr(O,2)}, {vr(AL,2)} op_sel_hi:[1,0]")
    a(f"ds_write_b64 v3, {vr(O,2)} offset:{L_OPART}")
    a("s_waitcnt lgkmcnt(0)")
    a("s_barrier")
    if stamp == 8:
        a("v_mov_b32 v8, s88"); a("v_mov_b32 v9, s90"); a("v_mov_b32 v10, s92"); a("v_mov_b32 v11, s94")
        a("s_lshl_b32 s35, s2, 8"); a("s_lshl_b32 s57, s3, 5"); a("s_add_u32 s35, s35, s57"); a("s_add_u32 s35, s35, 0x100080")
        a("v_mov_b32 v3, s35"); a("s_mov_b64 exec, 1")
        a("global_store_dwordx4 v3, v[8:11], s[30:31]")
    a("s_endpgm")

    a.label("L_helper")
    vm = vmh
    if stamp == 3: a("s_memrealtime s[92:93]")
    a("s_mov_b32 s60, s22"); a("s_mov_b32 s61, s23"); a("s_mov_b32 s62, 0x1c0000"); a("s_mov_b32 s63, 0x20000")
    a("s_mov_b32 s64, s12"); a("s_mov_b32 s65, s13"); a("s_mov_b32 s66, 0x400000"); a("s_mov_b32 s67, 0x20000")
    if "o" in abl: a("s_mov_b32 s66, 0")
    a("s_mov_b32 s68, s16"); a("s_mov_b32 s69, s17"); a("s_mov_b32 s70, 1024"); a("s_mov_b32 s71, 0x20000")
    a("s_mov_b32 s72, s24"); a("s_mov_b32 s73, s25"); a("s_mov_b32 s74, 1024"); a("s_mov_b32 s75, 0x20000")
    a("s_mul_i32 s35, s32, 0x10100")
    a("s_add_u32 s76, s30, s35"); a("s_addc_u32 s77, s31, 0"); a("s_mov_b32 s78, 0x10100"); a("s_mov_b32 s79, 0x20000")
    a("s_lshl_b32 s35, s32, 10")
    a("s_add_u32 s80, s26, s35"); a("s_addc_u32 s81, s27, 0"); a("s_mov_b32 s82, 1024"); a("s_mov_b32 s83, 0x20000")
    a("s_mov_b32 s84, s28"); a("s_mov_b32 s85, s29"); a("s_mov_b32 s86, 256"); a("s_mov_b32 s87, 0x20000")
    a("s_lshl_b32 s35, s3, 8")
    a("s_lshl_b32 s50, s33, 16"); a("s_add_u32 s50, s50, s35")
    a("s_lshl_b32 s51, s33, 17"); a("s_add_u32 s51, s51, s35")
    a("v_lshlrev_b32 v7, 11, v3")
    a("v_lshl_add_u32 v7, v2, 4, v7")
    if cearly:
        a("s_lshl_b32 s49, s33, 11")
        a("s_lshl_b32 s35, s3, 9")
        a("s_add_u32 s49, s49, s35")
        for j in range(4): a(f"v_mov_b32 v{28+j}, -1")
        a("v_lshlrev_b32 v32, 4, v0")
        a("s_mov_b32 exec_hi, 0")
        a(f"buffer_store_dwordx4 v[28:31], v32, s[76:79], s49 offen {cflags}")
        vmh.issue("CLR")
        a("s_mov_b64 exec, -1")
    TAG = 27
    a("s_lshl_b32 s49, s33, 11")
    a("s_lshl_b32 s35, s3, 9")
    a("s_add_u32 s49, s49, s35")
    a("v_mov_b32 v28, 0x10000")
    a("v_lshlrev_b32 v29, 4, v0")
    if ep1:
        a("s_cmp_lg_u32 s3, 0")
        a("s_cbranch_scc1 L_noep")
        a("s_mov_b64 exec, 1")
        a(f"buffer_load_dword v{TAG}, v28, s[76:79], 0 offen sc1")
        a("s_mov_b64 exec, -1")
        a.label("L_noep")
    else:
        a(f"buffer_load_dword v{TAG}, v28, s[76:79], 0 offen sc1"); vm.issue("ST")
    a("s_mov_b32 exec_hi, 0")
    a(f"buffer_load_dwordx4 {vr(WO)}, v29, s[76:79], s49 offen sc1"); vm.issue("ST")
    a("s_mov_b64 exec, -1")
    for j in range(8): a(f"v_mov_b32 v{ACC+j}, 0")
    a(f"v_mov_b32 v{CNTA}, {L_CNT}")
    a(f"ds_write_b32 v{CNTA}, v{ACC}")
    if rk: a(f"ds_write_b32 v{ACC}, v{ACC} offset:{L_ML+40}")
    if fb:
        a("v_mov_b32 v30, 4")
        a(f"ds_write_b32 v{ACC}, v30 offset:{L_ML+36}")
    if ctl:
        a("v_mov_b32 v28, 16"); a("v_mov_b32 v29, 16")
        a(f"ds_write_b64 v{ACC}, v[28:29] offset:{L_ML+32}")
    a("v_lshlrev_b32 v4, 5, v2")
    a("v_lshl_add_u32 v4, v3, 3, v4")
    a("s_lshl_b32 s35, s3, 9")
    a("v_add_u32 v1, s35, v4")

    def perm_pair(k, dst):
        r0 = RING + (k % NR) * 4; r1 = RING + ((k + 1) % NR) * 4
        if roll: advance(k + 1)
        else: vm.wait(("W", k + 1))
        for c in range(4):
            a(f"v_perm_b32 v{dst+2*c}, v{r1+c}, v{r0+c}, s46")
            a(f"v_perm_b32 v{dst+2*c+1}, v{r1+c}, v{r0+c}, s47")
        st["consumed"] = k + 2
    def dots(src, t, p):
        for j in range(8): a(f"v_dot2c_f32_bf16_dpp v{ACC+j}, v{src}, v{t+j} row_newbcast:{p} {DPPM}")
    a("; ---- q partials")
    for p in range(16):
        k = 2 * p
        t = TP + (p % 2) * 8
        perm_pair(k, t)
        if stamp == 3 and p == 0: a("s_memrealtime s[94:95]")
        if stamp == 3 and p == 8: a("s_memrealtime s[96:97]")
        if not roll: issue_until(int(Dq) if k + 2 + int(Dq) <= 32 else int(Dh))
        if p == 0: vm.wait("XQ")
        dots(XP, t, p)
    reduce8(ACC)
    a(f"ds_write_b64 v1, {vr(ACC,2)} offset:{L_QPART}")
    if ep1:
        vm.wait("ST")
        a("s_cmp_lg_u32 s3, 0")
        a("s_cbranch_scc1 L_noep2")
        a("s_mov_b64 exec, 1")
        a(f"ds_write_b32 v{CNTA}, v{TAG} offset:{L_FLAG - L_CNT}")
        a("s_mov_b64 exec, -1")
        a.label("L_noep2")
    if stamp == 3: a("s_memrealtime s[98:99]")
    a("s_waitcnt lgkmcnt(0)")
    if not pure: a("s_barrier")
    if (stamp and stamp != 7) or dbl: a("s_memrealtime s[90:91]")
    if ending in ("e2", "e3"):
        z = WO
        vm.wait("ST")
        if ep1:
            a(f"ds_read_b32 v{TAG}, v{CNTA} offset:{L_FLAG - L_CNT}")
            a("s_waitcnt lgkmcnt(0)")
        a(f"v_add_u32 v{TAG}, 1, v{TAG}")
        a(f"v_readfirstlane_b32 s53, v{TAG}")
        a(f"v_and_b32 v{TAG}, 0xff, v{TAG}")
        a(f"v_xor_b32 v28, v{z}, v{TAG}")
        for j in (1, 2, 3): a(f"v_bitop3_b32 v28, v28, v{z+j}, v{TAG} bitop3:0xf6")
        a("v_and_b32 v28, 0xff, v28")
        a("s_mov_b32 exec_hi, 0")
        a("v_cmp_eq_u32 vcc, 0, v28")
        a("s_cbranch_vccz L_nostale")
        for j in range(4): a(f"v_xor_b32 v{z+j}, 0xff, v{TAG}")
        a(f"buffer_store_dwordx4 {vr(z)}, v29, s[76:79], s49 offen sc1")
        a("s_waitcnt vmcnt(0)")
        a.label("L_nostale")
        a("s_mov_b64 exec, -1")
        a("s_mov_b32 s52, 0xffffff00")
    a("; ---- Wo slice -> registers (row pairs interleaved)")
    for p in range(16):
        perm_pair(32 + 2 * p, WO + 8 * p)
        if not roll: issue_until(int(Dh))
    GX, GW, GR = RING, RING + 4, RING + 8
    t = RING + 16
    a("v_lshlrev_b32 v5, 4, v0")
    a(f"buffer_load_dwordx4 {vr(GX)}, v5, s[36:39], 0 offen")
    a(f"buffer_load_dwordx4 {vr(GW)}, v5, s[72:75], 0 offen")
    a(f"buffer_load_dwordx4 {vr(GR)}, v5, s[68:71], 0 offen")
    a("v_lshrrev_b32 v6, 1, v4")
    a("s_lshl_b32 s35, s3, 8")
    a(f"buffer_load_dword v{XR}, v6, s[36:39], s35 offen")
    if ending == "e1":
        for j in range(4): a(f"v_mov_b32 v{t+j}, -1")
        a("s_mov_b32 exec_hi, 0")
        if "c" not in abl and not cearly: a(f"buffer_store_dwordx4 {vr(t)}, v5, s[76:79], s49 offen {cflags}")
        a("s_mov_b64 exec, -1")
    a("v_cmp_gt_u32 vcc, 8, v2")
    a("v_mov_b32 v28, s20"); a("v_mov_b32 v29, s18")
    a(f"v_cndmask_b32 v{GA}, v28, v29, vcc")
    a("v_mov_b32 v28, s21"); a("v_mov_b32 v29, s19")
    a(f"v_cndmask_b32 v{GA+1}, v28, v29, vcc")
    a(f"s_mul_i32 s35, s3, {HW_ROWS*3584}")
    a("s_lshl_b32 s45, s33, 7")
    a("s_add_u32 s35, s35, s45")
    a(f"v_mul_u32_u24 v28, {RG_ROWS*3584}, v3")
    a("v_and_b32 v29, 7, v2")
    a("v_lshl_add_u32 v28, v29, 4, v28")
    a("v_add_u32 v28, s35, v28")
    a(f"v_add_co_u32 v{GA}, vcc, v28, v{GA}")
    a(f"v_addc_co_u32 v{GA+1}, vcc, 0, v{GA+1}, vcc")
    for j in range(8): a(f"v_mov_b32 v{ACC+j}, 0")
    vm.waitall()
    a("; ---- gates g, r")
    for c in range(4):
        a(f"v_lshlrev_b32 v{t}, 16, v{GX+c}")
        a(f"v_and_b32 v{t+1}, 0xffff0000, v{GX+c}")
        a(f"v_lshlrev_b32 v{t+2}, 16, v{GW+c}")
        a(f"v_and_b32 v{t+3}, 0xffff0000, v{GW+c}")
        a(f"v_mul_f32 v{t}, v{t}, v{t+2}")
        a(f"v_mul_f32 v{t+1}, v{t+1}, v{t+3}")
        a(f"v_cvt_pk_bf16_f32 v{t+4+c}, v{t}, v{t+1}")
    ZG, ZR = t + 8, t + 9
    a(f"v_mov_b32 v{ZG}, 0"); a(f"v_mov_b32 v{ZR}, 0")
    for c in range(4):
        a(f"v_dot2c_f32_bf16 v{ZG}, 0x3f803f80, v{t+4+c}")
        a(f"v_dot2c_f32_bf16 v{ZR}, v{GX+c}, v{GR+c}")
    for dpp in ("quad_perm:[1,0,3,2]", "quad_perm:[2,3,0,1]", "row_half_mirror", "row_mirror"):
        for z in (ZG, ZR): a(f"v_add_f32_dpp v{z}, v{z}, v{z} {dpp} {DPPM}")
    for sw in ("v_permlane32_swap_b32", "v_permlane16_swap_b32"):
        for z in (ZG, ZR): a(f"v_mov_b32 v{z+2}, v{z}")
        for z in (ZG, ZR): a(f"{sw} v{z}, v{z+2}")
        for z in (ZG, ZR): a(f"v_add_f32 v{z}, v{z}, v{z+2}")
    def rnd2(r0, r1, tmp):
        a(f"v_cvt_pk_bf16_f32 v{tmp}, v{r0}, v{r1}")
        a(f"v_lshlrev_b32 v{r0}, 16, v{tmp}")
        a(f"v_and_b32 v{r1}, 0xffff0000, v{tmp}")
    def sigmoid(dst, src):
        a(f"v_mul_f32 v{dst}, {f2u(-LOG2E):#x}, v{src}")
        a(f"v_exp_f32 v{dst}, v{dst}")
        a(f"v_add_f32 v{dst}, 1.0, v{dst}")
        a(f"v_rcp_f32 v{dst}, v{dst}")
    rnd2(ZG, ZR, t)
    sigmoid(ZG, ZG); sigmoid(ZR, ZR)
    rnd2(ZG, ZR, t)
    a(f"v_mov_b32 v{G_}, v{ZG}")
    a(f"v_sub_f32 v{t+1}, 1.0, v{ZG}")
    a(f"v_cvt_pk_bf16_f32 v{t}, v{t+1}, v{t+1}")
    a(f"v_lshlrev_b32 v{t+1}, 16, v{t}")
    a(f"v_mul_f32 v{GR_}, v{t+1}, v{ZR}")
    a("s_cmp_eq_u32 s33, 28")
    a("s_cselect_b32 s35, 1.0, 0")
    a(f"v_mul_f32 v{t+1}, s35, v{t+1}")
    a(f"v_lshlrev_b32 v{YB}, 16, v{XR}")
    a(f"v_and_b32 v{YB+1}, 0xffff0000, v{XR}")
    a(f"v_mul_f32 v{YB}, v{YB}, v{t+1}")
    a(f"v_mul_f32 v{YB+1}, v{YB+1}, v{t+1}")
    a("v_mov_b32 v28, 1")
    a(f"s_cmp_lt_u32 s33, {0 if 'f' in abl else 28}")
    a("s_cbranch_scc1 L_ffn")
    a("s_mov_b64 exec, 1")
    a(f"ds_add_u32 v{CNTA}, v28")
    a("s_mov_b64 exec, -1")
    a("s_branch L_noffn")
    a.label("L_ffn")
    st["limit"] = len(stream)
    if not roll: issue_until(int(Dh))
    for p in range(16):
        k = 64 + 2 * p
        tt = TP + (p % 2) * 8
        perm_pair(k, tt)
        if not roll: issue_until(int(Dh))
        dots(XP, tt, p)
    reduce8(ACC)
    a(f"ds_write_b64 v1, {vr(ACC,2)} offset:{L_FPART}")
    a("s_waitcnt lgkmcnt(0)")
    a("s_mov_b64 exec, 1")
    a(f"ds_add_u32 v{CNTA}, v28")
    a("s_mov_b64 exec, -1")
    a("s_mov_b32 s59, 0x400000")
    a.label("L_fwait")
    a(f"ds_read_b32 v29, v{CNTA}")
    a("s_waitcnt lgkmcnt(0)")
    a("v_readfirstlane_b32 s35, v29")
    a(f"s_cmp_ge_u32 s35, {0 if pure else NH}")
    a("s_cbranch_scc1 L_fgo")
    a("s_sleep 8")
    a("s_sub_u32 s59, s59, 1")
    a("s_cbranch_scc0 L_fwait")
    a.label("L_fgo")
    a("v_and_b32 v5, 0xff, v4")
    t = TP
    for hw in range(4):
        a(f"ds_read_b64 {vr(t+4*hw,2)}, v5 offset:{L_FPART + hw*512}")
        a(f"ds_read_b64 {vr(t+4*hw+2,2)}, v5 offset:{L_FPART + hw*512 + 256}")
    for j in range(8): a(f"v_mov_b32 v{ACC+j}, 0")
    a("s_waitcnt lgkmcnt(0)")
    for hw in (1, 2, 3):
        a(f"v_pk_add_f32 {vr(t,2)}, {vr(t,2)}, {vr(t+4*hw,2)}")
        a(f"v_pk_add_f32 {vr(t+2,2)}, {vr(t+2,2)}, {vr(t+4*hw+2,2)}")
    rnd2(t, t + 1, t + 4)
    rnd2(t + 2, t + 3, t + 5)
    sigmoid(t + 6, t); sigmoid(t + 7, t + 1)
    a(f"v_mul_f32 v{t}, v{t}, v{t+6}")
    a(f"v_mul_f32 v{t+1}, v{t+1}, v{t+7}")
    rnd2(t, t + 1, t + 4)
    a(f"v_mul_f32 v{t}, v{t}, v{t+2}")
    a(f"v_mul_f32 v{t+1}, v{t+1}, v{t+3}")
    a(f"v_cvt_pk_bf16_f32 v{HP}, v{t}, v{t+1}")
    for p in range(8):
        k = 96 + 2 * p
        tt = TP + (p % 2) * 8
        perm_pair(k, tt)
        if not roll: issue_until(int(Dh))
        dots(HP, tt, p)
    reduce8(ACC)
    a(f"v_fmac_f32 v{YB}, v{ACC}, v{GR_}")
    a(f"v_fmac_f32 v{YB+1}, v{ACC+1}, v{GR_}")
    for j in range(8): a(f"v_mov_b32 v{ACC+j}, 0")
    a.label("L_noffn")
    assert not vm.q
    a("v_lshlrev_b32 v5, 3, v0")
    a("v_mov_b32 v6, 0")
    a("v_lshrrev_b32 v7, 1, v4")
    a("s_lshl_b32 s51, s3, 8")
    GO = 248 - 16 + 16
    if ending == "e3":
        D = ACC + 4
        CK, GOF, OOF, CNT = 16, 28, 29, 30
        NL = 16 // R
        GB = 3 if R == 4 else 2
        T0 = 32 - R
        a(f"v_lshrrev_b32 v252, {GB}, v0")
        a(f"v_and_b32 v253, {(1 << GB) - 1}, v0")
        a(f"v_lshlrev_b32 v{GOF}, 11, v252")
        a(f"v_lshl_add_u32 v{GOF}, v253, 4, v{GOF}")
        a(f"s_lshl_b32 s35, s3, {GB + 4}")
        a(f"v_add_u32 v{GOF}, s35, v{GOF}")
        if R == 4:
            a("s_and_b32 s35, s3, 1"); a("s_lshl_b32 s35, s35, 7")
            a("s_lshr_b32 s45, s3, 1"); a("s_lshl_b32 s45, s45, 2"); a("s_add_u32 s35, s35, s45")
        else:
            a("s_lshl_b32 s35, s3, 6")
        a(f"v_lshl_add_u32 v{OOF}, v253, 4, s35")
        a("v_lshrrev_b32 v252, 5, v0")
        a(f"v_lshl_add_u32 v{OOF}, v252, 3, v{OOF}")
        a("s_lshl_b32 s54, s32, 5")
        a("v_lshlrev_b32 v253, 4, v0")
        a("v_mov_b32 v254, 0x10000")
        a("v_mov_b32 v252, s53")
        a("s_waitcnt lgkmcnt(0)")
        if dry:
            a("s_mov_b32 s58, 1")
            a("s_mov_b64 s[56:57], 0")
            a("v_cmp_ne_u32 vcc, v6, v6")
            a("s_mov_b64 exec, 0")
            a("s_branch L_nb")
        a.label("L_real")
        if dry:
            a("s_mov_b32 s58, 0")
            a("s_mov_b64 s[56:57], -1")
            a("s_mov_b64 exec, -1")
            for j in range(8): a(f"v_mov_b32 v{ACC+j}, 0")
        if stamp in (1, 2, 6): a("s_memrealtime s[92:93]")
        if stamp == 5: a("s_mov_b32 s92, 0")
        a("s_waitcnt vmcnt(0) lgkmcnt(0)")
        a("s_barrier")
        a(f"ds_read_b32 v255, v6 offset:{L_ML+32}")
        a("s_waitcnt lgkmcnt(0)")
        a("v_readfirstlane_b32 s50, v255")
        a("s_andn2_b32 s55, s50, 31")
        a("s_and_b32 s50, s50, 31")
        a(f"s_cmp_lt_u32 s50, {T0}")
        a("s_cbranch_scc1 L_nog")
        a(f"buffer_load_dword v{CNT}, v6, s[84:87], s54 offen sc1")
        a(f"s_sub_u32 s35, s50, {T0}")
        if R == 4:
            a("s_lshl_b32 s51, s35, 8")
            a("s_lshl_b32 s12, s35, 9")
        else:
            a("s_lshr_b32 s51, s35, 1"); a("s_lshl_b32 s51, s51, 8")
            a("s_and_b32 s45, s35, 1"); a("s_lshl_b32 s45, s45, 2"); a("s_add_u32 s51, s51, s45")
            a("s_lshl_b32 s12, s35, 8")
        for k in range(1, NL): a(f"s_add_u32 s{12+k}, s12, {k * 0x10000 // NL}")
        a.label("L_nog")
        a("s_barrier")
        a.label("L_nb")
        if stamp in (1, 2, 5, 6): a("s_memrealtime s[94:95]")
        to = TP
        for w in range(NS): a(f"ds_read_b64 {vr(to+2*w,2)}, v5 offset:{L_OPART + w*512}")
        a("s_waitcnt lgkmcnt(0)" if stamp else "s_waitcnt lgkmcnt(2)")
        a(f"v_pk_add_f32 {vr(to,2)}, {vr(to,2)}, {vr(to+2,2)}")
        a("s_waitcnt lgkmcnt(0)")
        a(f"v_pk_add_f32 {vr(to+4,2)}, {vr(to+4,2)}, {vr(to+6,2)}")
        a(f"v_pk_add_f32 {vr(to,2)}, {vr(to,2)}, {vr(to+4,2)}")
        a(f"v_cvt_pk_bf16_f32 v{HP}, v{to}, v{to+1}")
        for p in range(16): dots(HP, WO + 8 * p, p)
        reduce8(ACC)
        a(f"v_fmac_f32 v{YB}, v{ACC}, v{G_}")
        a(f"v_fmac_f32 v{YB+1}, v{ACC+1}, v{G_}")
        if stamp in (1, 2, 5, 6): a("s_memrealtime s[96:97]"); a("s_memrealtime s[98:99]")
        a(f"v_and_or_b32 v{D}, v{YB}, s52, v{TAG}")
        a(f"v_and_or_b32 v{D+1}, v{YB+1}, s52, v{TAG}")
        a(f"v_and_or_b32 v{D+2}, v{YB}, s52, v{TAG}")
        a(f"v_and_or_b32 v{D+3}, v{YB+1}, s52, v{TAG}")
        a(f"v_permlane32_swap_b32 v{D}, v{D+2}")
        a(f"v_permlane32_swap_b32 v{D+1}, v{D+3}")
        a("s_mov_b32 exec_hi, 0")
        if dry:
            a("s_cmp_eq_u32 s58, 1")
            a("s_cbranch_scc1 L_p0w")
        a(f"buffer_store_dwordx4 {vr(D)}, v253, s[76:79], s49 offen {stf}")
        a(f"s_cmp_lt_u32 s50, {T0}")
        a("s_cbranch_scc1 L_hend")
        a("s_mov_b64 exec, -1")
        a("s_mov_b32 s59, 0x400000")
        a("s_waitcnt vmcnt(1)")
        a.label("L_cnt")
        a(f"v_readfirstlane_b32 s35, v{CNT}")
        a("s_sub_u32 s35, s35, s55")
        a("s_cmp_ge_u32 s35, 32")
        a("s_cbranch_scc1 L_go")
        a(f"buffer_load_dword v{CNT}, v6, s[84:87], s54 offen sc1")
        a("s_waitcnt vmcnt(0)")
        a("s_sub_u32 s59, s59, 1")
        a("s_cbranch_scc0 L_cnt")
        a("s_branch L_fail")
        a.label("L_go")
        def gather(st_i):
            for k in range(NL): a(f"buffer_load_dwordx4 {vr(RING+16*st_i+4*k)}, v{GOF}, s[76:79], s{12+k} offen {gaf}")
        for i in range(nset - 1):
            gather(i)
            if pgap: a(f"s_nop {pgap}")
        a.label("L_poll")
        for i in range(nset):
            gather((i + nset - 1) % nset)
            if i == 0: a.label("L_p0w")
            b = RING + 16 * i
            if stamp == 5: a("s_add_u32 s92, s92, 1")
            if R == 8:
                a(f"s_waitcnt vmcnt({2*(nset-1)})")
                a(f"v_xor_b32 v{CK}, v{b}, v{TAG}")
                a(f"v_xor_b32 v{CK+1}, v{b+1}, v{TAG}")
                for j in range(2, 8): a(f"v_bitop3_b32 v{CK+j%2}, v{CK+j%2}, v{b+j}, v{TAG} bitop3:0xf6")
                a(f"v_pk_add_f32 {vr(ACC,2)}, {vr(b,2)}, {vr(b+4,2)}")
                a(f"v_or_b32 v{CK}, v{CK}, v{CK+1}")
                a(f"v_pk_add_f32 {vr(ACC+2,2)}, {vr(b+2,2)}, {vr(b+6,2)}")
                a(f"v_cmp_ne_u32_sdwa vcc, v{CK}, v6 src0_sel:BYTE_0 src1_sel:DWORD")
            else:
                a(f"s_waitcnt vmcnt({4*(nset-1)+2})")
                a(f"v_xor_b32 v{CK}, v{b}, v{TAG}")
                a(f"v_xor_b32 v{CK+1}, v{b+1}, v{TAG}")
                for j in range(2, 8): a(f"v_bitop3_b32 v{CK+j%2}, v{CK+j%2}, v{b+j}, v{TAG} bitop3:0xf6")
                a(f"v_pk_add_f32 {vr(ACC,2)}, {vr(b,2)}, {vr(b+4,2)}")
                a(f"v_pk_add_f32 {vr(ACC+2,2)}, {vr(b+2,2)}, {vr(b+6,2)}")
                a(f"s_waitcnt vmcnt({4*(nset-1)})")
                for j in range(8, 16): a(f"v_bitop3_b32 v{CK+j%2}, v{CK+j%2}, v{b+j}, v{TAG} bitop3:0xf6")
                a(f"v_pk_add_f32 {vr(ACC+4,2)}, {vr(b+8,2)}, {vr(b+12,2)}")
                a(f"v_or_b32 v{CK}, v{CK}, v{CK+1}")
                a(f"v_pk_add_f32 {vr(ACC+6,2)}, {vr(b+10,2)}, {vr(b+14,2)}")
                a(f"v_cmp_ne_u32_sdwa vcc, v{CK}, v6 src0_sel:BYTE_0 src1_sel:DWORD")
                a(f"v_pk_add_f32 {vr(ACC,2)}, {vr(ACC,2)}, {vr(ACC+4,2)}")
                a(f"v_pk_add_f32 {vr(ACC+2,2)}, {vr(ACC+2,2)}, {vr(ACC+6,2)}")
            a("s_cbranch_vccz L_ok")
            if dry: a("s_cbranch_execz L_ok")
        a("s_sub_u32 s59, s59, 1")
        a("s_cbranch_scc0 L_poll")
        a.label("L_fail")
        if stamp == 7:
            a("v_mov_b32 v8, 0x4000"); a("v_mov_b32 v9, s50")
            a("s_mov_b64 exec, 1")
            a("buffer_atomic_add v8, v6, s[84:87], 0 offen offset:4 sc1")
        a("s_branch L_hend")
        a.label("L_ok")
        a("s_nop 0")
        if stamp == 5: a("s_waitcnt lgkmcnt(0)"); a("s_memrealtime s[98:99]")
        a(f"v_permlane32_swap_b32 v{ACC}, v{ACC+2}")
        a(f"v_permlane32_swap_b32 v{ACC+1}, v{ACC+3}")
        a(f"v_pk_add_f32 {vr(ACC,2)}, {vr(ACC,2)}, {vr(ACC+2,2)}")
        a(f"v_mov_b32 v{ACC+2}, v{ACC}")
        a(f"v_mov_b32 v{ACC+3}, v{ACC+1}")
        a(f"v_permlane16_swap_b32 v{ACC}, v{ACC+2}")
        a(f"v_permlane16_swap_b32 v{ACC+1}, v{ACC+3}")
        a(f"v_pk_add_f32 {vr(ACC,2)}, {vr(ACC,2)}, {vr(ACC+2,2)}")
        a(f"v_add_f32_dpp v{ACC}, v{ACC}, v{ACC} row_ror:8 {DPPM}")
        a(f"v_add_f32_dpp v{ACC+1}, v{ACC+1}, v{ACC+1} row_ror:8 {DPPM}")
        if R == 8:
            a(f"v_add_f32_dpp v{ACC}, v{ACC}, v{ACC} row_ror:4 {DPPM}")
            a(f"v_add_f32_dpp v{ACC+1}, v{ACC+1}, v{ACC+1} row_ror:4 {DPPM}")
        a(f"v_cvt_pk_bf16_f32 v{ACC}, v{ACC}, v{ACC+1}")
        if dry:
            a("s_cmp_eq_u32 s58, 1")
            a("s_cbranch_scc1 L_real")
        a(f"s_mov_b32 exec_lo, {(1 << (1 << GB)) - 1}")
        a(f"s_mov_b32 exec_hi, {(1 << (1 << GB)) - 1}")
        a(f"buffer_store_dword v{ACC}, v{OOF}, s[80:83], s51 offen {oflags}")
        a("s_cmp_lg_u32 s50, 31")
        a("s_cbranch_scc1 L_hend")
        a("s_cmp_lg_u32 s3, 0")
        a("s_cbranch_scc1 L_hend")
        a("s_mov_b64 exec, 1")
        a(f"buffer_store_dword v252, v254, s[76:79], 0 offen {oflags}")
    else:
        if stamp in (1, 2, 6): a("s_memrealtime s[92:93]")
        a("s_waitcnt lgkmcnt(0)")
        a("s_barrier")
        if stamp in (1, 2, 5, 6): a("s_memrealtime s[94:95]")
        tm, tl, to = TP, TP + 4, TP + 8
        if ending != "e0": a(f"ds_read_b32 v255, v6 offset:{L_ML+32}")
        a(f"ds_read_b128 {vr(tm)}, v6 offset:{L_ML}")
        a(f"ds_read_b128 {vr(tl)}, v6 offset:{L_ML+16}")
        for w in range(NS): a(f"ds_read_b64 {vr(to+2*w,2)}, v5 offset:{L_OPART + w*512}")
        def gather(base):
            for k in range(16): a(f"buffer_load_dwordx4 {vr(base+4*k)}, v{goff[k]}, s[76:79], 0 offen sc1")
        if ending != "e0":
            a("s_waitcnt lgkmcnt(0)" if stamp else "s_waitcnt lgkmcnt(6)")
            a("v_readfirstlane_b32 s50, v255")
            a("s_cmp_lg_u32 s50, 31")
            a("s_cbranch_scc1 L_nog")
            gather(RING)
            a.label("L_nog")
        a("s_waitcnt lgkmcnt(0)" if stamp else "s_waitcnt lgkmcnt(5)")
        MX = 16
        a(f"v_max3_f32 v{MX}, v{tm}, v{tm+1}, v{tm+2}")
        a(f"v_max_f32 v{MX}, v{MX}, v{tm+3}")
        a(f"v_mul_f32 v{MX}, s48, v{MX}")
        for w in range(NS): a(f"v_fma_f32 v{tm+w}, v{tm+w}, s48, -v{MX}")
        for w in range(NS): a(f"v_exp_f32 v{tm+w}, v{tm+w}")
        a("s_waitcnt lgkmcnt(0)")
        a(f"v_mul_f32 v{MX+1}, v{tm}, v{tl}")
        a(f"v_mul_f32 v{MX+2}, v{tm}, v{to}")
        a(f"v_mul_f32 v{MX+3}, v{tm}, v{to+1}")
        for w in range(1, NS):
            a(f"v_fmac_f32 v{MX+1}, v{tm+w}, v{tl+w}")
            a(f"v_fmac_f32 v{MX+2}, v{tm+w}, v{to+2*w}")
            a(f"v_fmac_f32 v{MX+3}, v{tm+w}, v{to+2*w+1}")
        a(f"v_rcp_f32 v{MX+1}, v{MX+1}")
        a(f"v_mul_f32 v{MX+2}, v{MX+2}, v{MX+1}")
        a(f"v_mul_f32 v{MX+3}, v{MX+3}, v{MX+1}")
        a(f"v_cvt_pk_bf16_f32 v{HP}, v{MX+2}, v{MX+3}")
        for p in range(16): dots(HP, WO + 8 * p, p)
        reduce8(ACC)
        a(f"v_fmac_f32 v{YB}, v{ACC}, v{G_}")
        a(f"v_fmac_f32 v{YB+1}, v{ACC+1}, v{G_}")
        D = ACC + 4
        def pack_store():
            if ending == "e2":
                a(f"v_and_or_b32 v{D}, v{YB}, s52, v{TAG}")
                a(f"v_and_or_b32 v{D+1}, v{YB+1}, s52, v{TAG}")
            else:
                a(f"v_min_u32 v{D}, -2, v{YB}")
                a(f"v_min_u32 v{D+1}, -2, v{YB+1}")
            a(f"v_mov_b32 v{D+2}, v{D}")
            a(f"v_mov_b32 v{D+3}, v{D+1}")
            a("v_lshlrev_b32 v5, 4, v0")
            a(f"v_permlane32_swap_b32 v{D}, v{D+2}")
            a(f"v_permlane32_swap_b32 v{D+1}, v{D+3}")
            a("s_mov_b32 exec_hi, 0")
            if "s" not in abl: a(f"buffer_store_dwordx4 {vr(D)}, v5, s[76:79], s49 offen sc1")
            a("s_mov_b64 exec, -1")
        def sum16(base, dst, waits):
            CK = ACC + 4
            if ending == "e2":
                a(f"v_mov_b32 v{CK}, 0")
                a(f"s_waitcnt vmcnt({waits + 15})")
                a("s_mov_b32 exec_lo, 0")
                for j in range(4): a(f"v_bitop3_b32 v{CK}, v{CK}, v{base+j}, v{TAG} bitop3:0xf6")
                a("s_mov_b64 exec, -1")
            for k in range(1, 16):
                if waits is not None: a(f"s_waitcnt vmcnt({waits + 15 - k})")
                s0 = base if k == 1 else dst
                if ending == "e2":
                    for j in range(4): a(f"v_bitop3_b32 v{CK}, v{CK}, v{base+4*k+j}, v{TAG} bitop3:0xf6")
                a(f"v_pk_add_f32 {vr(dst,2)}, {vr(s0,2)}, {vr(base+4*k,2)}")
                a(f"v_pk_add_f32 {vr(dst+2,2)}, {vr(s0+2,2)}, {vr(base+4*k+2,2)}")
        if ending == "e0":
            pack_store()
            if stamp in (1, 2, 6): a("s_memrealtime s[96:97]")
            a("s_waitcnt vmcnt(0)")
            a("s_barrier")
            a("s_cmp_lg_u32 s3, 0")
            a("s_cbranch_scc1 L_watom")
            a("s_lshl_b32 s35, s32, 5")
            a("v_mov_b32 v28, 1")
            a("s_mov_b64 exec, 1")
            a("buffer_atomic_add v28, v6, s[84:87], s35 offen sc0 sc1")
            a("s_waitcnt vmcnt(0)")
            a(f"ds_write_b32 v6, v28 offset:{L_FLAG}")
            a("s_waitcnt lgkmcnt(0)")
            a("s_mov_b64 exec, -1")
            a.label("L_watom")
            a("s_barrier")
            a(f"ds_read_b32 v28, v6 offset:{L_FLAG}")
            a("s_waitcnt lgkmcnt(0)")
            a("v_readfirstlane_b32 s35, v28")
            a("s_cmp_lg_u32 s35, 31")
            if stamp in (1, 2, 6): a("s_memrealtime s[98:99]")
            a("s_cbranch_scc1 L_hend")
            a("v_and_b32 v28, 31, v0")
            a("v_lshlrev_b32 v28, 4, v28")
            a("v_lshrrev_b32 v29, 5, v0")
            a("v_lshl_add_u32 v28, v29, 11, v28")
            a("s_lshl_b32 s35, s3, 9")
            for k in range(16):
                a(f"buffer_load_dwordx4 {vr(WO+4*k)}, v28, s[76:79], s35 offen sc1")
                a("s_add_u32 s35, s35, 4096")
            sum16(WO, ACC, 0)
            a(f"v_permlane32_swap_b32 v{ACC}, v{ACC+2}")
            a(f"v_permlane32_swap_b32 v{ACC+1}, v{ACC+3}")
            a(f"v_pk_add_f32 {vr(ACC,2)}, {vr(ACC,2)}, {vr(ACC+2,2)}")
            a(f"v_cvt_pk_bf16_f32 v{ACC}, v{ACC}, v{ACC+1}")
            a(f"buffer_store_dword v{ACC}, v7, s[80:83], s51 offen {oflags}")
        else:
            if stamp in (1, 2, 5, 6): a("s_memrealtime s[96:97]"); a("s_memrealtime s[98:99]")
            if stamp == 5: a("s_mov_b32 s92, 0")
            a("s_cmp_eq_u32 s50, 31")
            a("s_cbranch_scc1 L_red")
            pack_store()
            a("s_branch L_hend")
            a.label("L_red")
            SB, SC = WO, WO + 64
            def check(base, ok, tag):
                if stamp == 5: a("s_add_u32 s92, s92, 1")
                if ending == "e2":
                    a(f"v_and_b32 v{ACC+4}, 0xff, v{ACC+4}")
                    a(f"v_cmp_ne_u32 vcc, 0, v{ACC+4}")
                    a(f"s_cbranch_vccz {ok}")
                    return
                a(f"v_add_f32 v{ACC+4}, v{ACC}, v{ACC+1}")
                a(f"v_add_f32 v{ACC+5}, v{ACC+2}, v{ACC+3}")
                a(f"v_cmp_u_f32 vcc, v{ACC+4}, v{ACC+5}")
                a(f"s_cbranch_vccz {ok}")
                a(f"v_max_u32 v{ACC+4}, v{base}, v{base+1}")
                for k in range(2, 64, 2): a(f"v_max3_u32 v{ACC+4}, v{base+k}, v{base+k+1}, v{ACC+4}")
                a(f"v_cmp_eq_u32 vcc, -1, v{ACC+4}")
                a(f"s_cbranch_vccz {ok}")
            gather(SB)
            sum16(RING, ACC, 16)
            check(RING, "L_ok", "a")
            a.label("L_poll")
            gather(SC)
            sum16(SB, ACC, 16)
            check(SB, "L_ok", "b")
            gather(SB)
            sum16(SC, ACC, 16)
            check(SC, "L_ok", "c")
            a("s_branch L_poll")
            a.label("L_ok")
            if stamp == 5: a("s_waitcnt lgkmcnt(0)"); a("s_memrealtime s[98:99]")
            a(f"v_permlane32_swap_b32 v{ACC}, v{ACC+2}")
            a(f"v_permlane32_swap_b32 v{ACC+1}, v{ACC+3}")
            a(f"v_pk_add_f32 {vr(ACC,2)}, {vr(ACC,2)}, {vr(ACC+2,2)}")
            a(f"v_pk_add_f32 {vr(ACC,2)}, {vr(ACC,2)}, {vr(YB,2)}")
            a(f"v_cvt_pk_bf16_f32 v{ACC}, v{ACC}, v{ACC+1}")
            a(f"buffer_store_dword v{ACC}, v7, s[80:83], s51 offen {oflags}")
            if ending == "e2":
                a("s_cmp_lg_u32 s3, 0")
                a("s_cbranch_scc1 L_hend")
                a(f"v_mov_b32 v{ACC+4}, 0x10000")
                a(f"v_mov_b32 v{ACC+5}, s53")
                a("s_mov_b64 exec, 1")
                a(f"buffer_store_dword v{ACC+5}, v{ACC+4}, s[76:79], 0 offen")
                a("s_mov_b64 exec, -1")
    a.label("L_hend")
    if dbl:
        a("s_waitcnt vmcnt(0)")
        a("s_memrealtime s[92:93]")
        a("s_waitcnt lgkmcnt(0)")
        if dbl == 1: a("s_sub_u32 s94, s92, s88")
        else: a("s_sub_u32 s94, s90, s88"); a("s_mul_i32 s94, s94, 4")
        a.label("L_dbl")
        a("s_memrealtime s[96:97]")
        a("s_waitcnt lgkmcnt(0)")
        a("s_sub_u32 s95, s96, s92")
        a("s_cmp_lt_u32 s95, s94")
        a("s_cbranch_scc1 L_dbl")
    if stamp and stamp != 7:
        a("s_waitcnt vmcnt(0)")
        a("s_memrealtime s[100:101]")
        a("s_cmp_lg_u32 s3, 0")
        a("s_cbranch_scc1 L_done")
        a("s_mov_b64 exec, 1")
        a("s_getreg_b32 s35, hwreg(HW_REG_XCC_ID)")
        a("s_and_b32 s35, s35, 15")
        a("s_getreg_b32 s44, hwreg(HW_REG_HW_ID)")
        a("s_lshl_b32 s44, s44, 4")
        a("s_or_b32 s35, s35, s44")
        a("s_waitcnt lgkmcnt(0)")
        for i, r in enumerate([88, 90, 92, 94, 96, 98, 100]): a(f"v_mov_b32 v{8+i}, s{r}")
        a("v_mov_b32 v15, s35")
        if stamp == 6:
            a("v_not_b32 v16, v8")
            a("v_not_b32 v17, v11")
            a("v_mov_b32 v3, 0")
            for i, r in enumerate([16, 8, 9, 10, 17, 11, 14]):
                a(f"buffer_atomic_umax v{r}, v3, s[84:87], 0 offen offset:{4*i} sc1")
        else:
            a("s_lshl_b32 s35, s2, 8")
            a("s_add_u32 s35, s35, 0x100000")
            a("v_mov_b32 v3, s35")
            a("global_store_dwordx4 v3, v[8:11], s[30:31]")
            a("global_store_dwordx4 v3, v[12:15], s[30:31] offset:16")
    a.label("L_done")
    a("s_endpgm")
    a.pad()
    hdr = HEADER.replace("@@LAUNCH@@", f"; @launch grid=(256,1,1) block=({(NS+NH)*64},1,1) lds={L_KV + 4*PL*8192 if PL else LDS_BYTES}")
    tail = f""".section .rodata,"a"
.p2align 6
.amdhsa_kernel {KN}
  .amdhsa_next_free_vgpr 256
  .amdhsa_next_free_sgpr 102
  .amdhsa_accum_offset 256
  .amdhsa_group_segment_fixed_size 0
  .amdhsa_kernarg_size 112
  .amdhsa_user_sgpr_count 2
  .amdhsa_user_sgpr_kernarg_segment_ptr 1
  .amdhsa_system_sgpr_workgroup_id_x 1
.end_amdhsa_kernel
"""
    return hdr + DOC + a.text() + tail

if __name__ == "__main__":
    out = sys.argv[1]
    kw = {}
    for s in sys.argv[2:]:
        k, v = s.split("=")
        if k in ("winp", "sched", "winf", "abl", "ending", "wflags", "kvflags", "qflags", "Dq", "Dh", "boost", "order", "pure4", "p4win", "p4wo", "ctl", "cflags", "oflags", "rcols", "wfin", "pfl", "stf", "gaf", "fb", "pv", "pk", "wmid"): v = v.replace("+", " ")
        else: v = int(v)
        kw[k] = v
    open(out, "w").write(gen(**kw))
```
